```python
import torch

def _softmax(x, axis=-1):
    return torch.softmax(x, dim=axis)

def _gelu(x):
    return torch.nn.functional.gelu(x, approximate='tanh')

def _silu(x):
    return torch.nn.functional.silu(x)

def _sigmoid(x):
    return torch.sigmoid(x)

def _layernorm(x, axis=-1, eps=1e-05):
    m = x.mean(dim=axis, keepdim=True)
    v = x.var(dim=axis, keepdim=True, unbiased=False)
    return (x - m) / torch.sqrt(v + eps)

def _scatter_add(tgt, idx, src, axis=0):
    return tgt.clone().index_add_(axis, idx, src)

def _segment_sum(src, seg, n):
    out = torch.zeros((n,) + src.shape[1:], dtype=src.dtype)
    return out.index_add_(0, seg, src)

def _pad(x, pw):
    flat = tuple((v for pair in reversed(pw) for v in pair))
    return torch.nn.functional.pad(x, flat)
kernel_name = 'adaLN_cond__grouped_kv_mqa__dense_activation_silu__prompt'

def setup_inputs():

    _w = lambda a: (lambda t: t.to(torch.bfloat16) if t.is_floating_point() else t)(torch.as_tensor(a))

    def _A_setup():
        B, S, D, H = (1, 2048, 640, 32)
        Dh = D // H
        return {'x': _w((lambda *s: torch.randn(*s, dtype=torch.bfloat16) * 0.05)(B, S, D)), 'wq': _w((lambda *s: torch.randn(*s, dtype=torch.bfloat16) * 0.05)(D, H * Dh)), 'wk': _w((lambda *s: torch.randn(*s, dtype=torch.bfloat16) * 0.05)(D, Dh)), 'wv': _w((lambda *s: torch.randn(*s, dtype=torch.bfloat16) * 0.05)(D, Dh)), 'wo': _w((lambda *s: torch.randn(*s, dtype=torch.bfloat16) * 0.05)(H * Dh, D))}
    _A_in = _A_setup()

    def _B_setup():
        B, S, D, F = (1, 2048, 640, 1536)
        return {'x': _w((lambda *s: torch.randn(*s, dtype=torch.bfloat16) * 0.05)(B, S, D)), 'w1': _w((lambda *s: torch.randn(*s, dtype=torch.bfloat16) * 3.2)(D, F) * D ** (-0.5)), 'w2': _w((lambda *s: torch.randn(*s, dtype=torch.bfloat16) * 0.4)(F, D) * F ** (-0.5))}
    _B_in = _B_setup()
    return {'A_x': _A_in['x'], 'A_wq': _A_in['wq'], 'A_wk': _A_in['wk'], 'A_wv': _A_in['wv'], 'A_wo': _A_in['wo'], 'B_x': _B_in['x'], 'B_w1': _B_in['w1'], 'B_w2': _B_in['w2'], 'c': _w((lambda *s: torch.randn(*s, dtype=torch.bfloat16) * 0.1)(1, 640) * 8.0), 'w_mod': _w((lambda *s: torch.randn(*s, dtype=torch.bfloat16) * 0.1)(640, 6 * 640) * 640 ** (-0.5) * 8.0)}

def reference(A_x, A_wq, A_wk, A_wv, A_wo, B_x, B_w1, B_w2, c, w_mod):

    def _A_ref(x, wq, wk, wv, wo):
        B, S, D = x.shape
        H = 32
        Dh = D // H
        q = (lambda x, *d: x.permute(*d))((x @ wq).reshape(B, S, H, Dh), 0, 2, 1, 3)
        k = x @ wk
        v = x @ wv
        scores = torch.einsum('bhqd,bkd->bhqk', q, k) * Dh ** (-0.5)
        p = _softmax(scores, axis=-1)
        o = torch.einsum('bhqk,bkd->bhqd', p, v)
        return (lambda x, *d: x.permute(*d))(o, 0, 2, 1, 3).reshape(B, S, H * Dh) @ wo

    def _B_ref(x, w1, w2):
        h = torch.einsum('bsd,df->bsf', x, w1)
        h = _silu(h)
        out = torch.einsum('bsf,fd->bsd', h, w2)
        return out
    x = A_x
    mod = (_silu(c) @ w_mod).reshape(c.shape[0], 6, 1, -1)
    sa, ca, ga, sb, cb, gb = (mod[:, 0].clone(), mod[:, 1].clone(), mod[:, 2].clone(), mod[:, 3].clone(), mod[:, 4].clone(), mod[:, 5].clone())
    h = _layernorm(x, axis=-1) * (1 + ca) + sa
    x = x + ga * _A_ref(h, A_wq, A_wk, A_wv, A_wo)
    h = _layernorm(x, axis=-1) * (1 + cb) + sb
    x = x + gb * _B_ref(h, B_w1, B_w2)
    return x
```

```python
import re

def v(i, n=1): return f"v{i}" if n == 1 else f"v[{i}:{i+n-1}]"
def a(i, n=1): return f"a{i}" if n == 1 else f"a[{i}:{i+n-1}]"
def s(i, n=1): return f"s{i}" if n == 1 else f"s[{i}:{i+n-1}]"

class Kern:
    def __init__(self, name, vgpr, agpr=0, sgpr=100):
        self.name, self.vgpr, self.agpr, self.sgpr = name, vgpr, agpr, sgpr
        self.L = []
        self.vm = 0
        self.lg = 0
        self.uid = 0
    def __call__(self, text):
        for line in text.split("\n"):
            line = line.strip()
            if not line: continue
            self.L.append(line)
            m = line.split()[0]
            if m.startswith(("buffer_load", "buffer_store", "global_load", "global_store", "buffer_atomic", "global_atomic")):
                self.vm += 1
            elif m.startswith("ds_"):
                self.lg += 1
    def label(self, base):
        self.uid += 1
        return f"L_{self.name}_{base}_{self.uid}"
    def vm_ticket(self): return self.vm
    def wait_vm(self, ticket):
        n = self.vm - ticket
        assert 0 <= n
        self(f"s_waitcnt vmcnt({min(n, 63)})")
    def lg_ticket(self): return self.lg
    def wait_lg(self, ticket):
        n = self.lg - ticket
        assert 0 <= n
        self(f"s_waitcnt lgkmcnt({min(n, 15)})")
    def stamp(self, name=""):
        self.L.append(f";STAMP {name}")
    def srd(self, d, base, nbytes):
        self(f"s_mov_b32 s{d}, s{base}\ns_mov_b32 s{d+1}, s{base+1}\ns_mov_b32 s{d+2}, {hex(nbytes)}\ns_mov_b32 s{d+3}, 0x00020000")
    def text(self):
        out = [f".globl {self.name}", ".p2align 8", f".type {self.name},@function", f"{self.name}:"]
        for l in self.L:
            out.append(l if l.endswith(":") or l.startswith(".") else "    " + l)
        return "\n".join(out) + "\n"
    def desc(self):
        acc = (self.vgpr + 3) // 4 * 4
        nfv = acc + self.agpr if self.agpr else self.vgpr
        return f""".p2align 6
.amdhsa_kernel {self.name}
  .amdhsa_next_free_vgpr {nfv}
  .amdhsa_next_free_sgpr {self.sgpr}
  .amdhsa_accum_offset {acc}
  .amdhsa_group_segment_fixed_size 0
  .amdhsa_kernarg_size 104
  .amdhsa_user_sgpr_count 2
  .amdhsa_user_sgpr_kernarg_segment_ptr 1
  .amdhsa_system_sgpr_workgroup_id_x 1
.end_amdhsa_kernel
"""

REG = re.compile(r"(?<![\w.])(-?\|?)([vas])(\d+|\[(\d+):(\d+)\])(?![\w])")
TRANS = ("v_exp_", "v_log_", "v_rcp_", "v_rsq_", "v_sqrt_", "v_sin_", "v_cos_")
def regs_of(op):
    op = op.strip()
    out = set()
    if op in ("vcc",): return {("s", "vcc")}
    if op in ("exec",): return {("s", "exec")}
    if op == "m0": return {("s", "m0")}
    if op in ("vcc_lo", "vcc_hi"): return {("s", "vcc")}
    if op in ("exec_lo", "exec_hi"): return {("s", "exec")}
    m = re.fullmatch(r"-?(?:abs\()?\|?([vas])(?:(\d+)|\[(\d+):(\d+)\])\|?\)?", op)
    if m:
        k = m.group(1)
        if m.group(2) is not None: return {(k, int(m.group(2)))}
        return {(k, i) for i in range(int(m.group(3)), int(m.group(4)) + 1)}
    return out
def passes(m):
    if "32x32x4_2b" in m or "32x32x4bf16" in m: return 16
    if "32x32" in m: return 8
    if "16x16x4_4b" in m: return 8
    if "16x16" in m: return 4
    if "4x4" in m: return 2
    raise ValueError(m)
class Ins:
    def __init__(self, line):
        self.line = line
        body = line.split(";")[0].strip()
        parts = body.split(None, 1)
        self.m = m = parts[0]
        rest = parts[1] if len(parts) > 1 else ""
        ops = [o.strip() for o in re.split(r",(?![^\[]*\])", rest)] if rest else []
        mods = ""
        if ops:
            lp = ops[-1].split(None, 1)
            ops[-1] = lp[0] if lp else ""
            mods = lp[1] if len(lp) > 1 else ""
        self.ops, self.mods = ops, mods
        R = [regs_of(o) for o in ops]
        self.w, self.r = set(), set()
        self.mfma = m.startswith(("v_mfma", "v_smfmac"))
        self.valu = m.startswith("v_") and not self.mfma
        self.trans = m.startswith(TRANS)
        self.vmem = m.startswith(("buffer_", "global_"))
        self.ds = m.startswith("ds_")
        self.salu = m.startswith("s_")
        self.dpp = "dpp" in m or "row_" in mods or "quad_perm" in mods
        self.dot = m.startswith("v_dot")
        self.ldsdma = self.vmem and (" lds" in " " + mods or "_lds_" in m)
        self.srcA = self.srcB = self.srcC = set()
        self.widestore = False
        if self.mfma:
            self.w = R[0]; self.p = passes(m)
            if m.startswith("v_smfmac"):
                self.srcC = R[0]; self.srcAB = R[1] | R[2] | R[3]
            else:
                self.srcC = R[3]; self.srcAB = R[1] | R[2]
            self.r = self.srcC | self.srcAB
        elif self.valu:
            nd = 1
            if re.match(r"v_(add|sub|subrev|addc|subb|subbrev)_co|v_div_scale|v_mad_u64|v_mad_i64", m): nd = 2
            if m.startswith("v_permlane") and "swap" in m or m.startswith("v_swap"):
                self.w = R[0] | R[1]; self.r = R[0] | R[1]
            else:
                for x in R[:nd]: self.w |= x
                for x in R[nd:]: self.r |= x
                if re.match(r"v_(fmac|dot2c|pk_fmac|mac|writelane)", m) or self.dpp or "sdwa" in m: self.r |= R[0]
                if m.startswith("v_cndmask") and len(ops) == 3: self.r |= {("s", "vcc")}
            assert not m.startswith("v_cmpx"), "no cmpx"
        elif self.vmem:
            if m.startswith(("buffer_inv", "buffer_wbl2")): pass
            elif "load" in m and not self.ldsdma:
                self.w = R[0]
                for x in R[1:]: self.r |= x
            elif "atomic" in m and ("sc0" in mods):
                self.w = R[0]
                for x in R: self.r |= x
            else:
                for x in R: self.r |= x
                if "store" in m and ("x3" in m or "x4" in m):
                    self.widestore = True
                    self.sdata = R[0] if m.startswith("buffer") else R[1]
            if self.ldsdma: self.r |= {("s", "m0")}
        elif self.ds:
            if "read" in m or "bpermute" in m or "permute" in m or "swizzle" in m or "rtn" in m:
                self.w = R[0]
                for x in R[1:]: self.r |= x
            else:
                for x in R: self.r |= x
        elif self.salu:
            if re.match(r"s_(cmp|cbranch|branch|waitcnt|nop|barrier|endpgm|setprio|sleep|bitcmp|setreg)", m):
                for x in R: self.r |= x
            else:
                if R: self.w = set(R[0])
                for x in R[1:]: self.r |= x
                if "saveexec" in m: self.w |= {("s", "exec")}
        self.ws = 1
        if m == "s_nop": self.ws = int(ops[0], 0) + 1
def need(p, c):
    best = (0, "")
    def up(n, why):
        nonlocal best
        if n > best[0]: best = (n, why)
    vw = {x for x in p.w if x[0] in "va"}
    sw = {x for x in p.w if x[0] == "s"}
    if p.valu:
        if c.mfma and vw & c.r: up(2, "valu->mfma")
        if p.trans and c.valu and not c.trans and vw & c.r: up(1, "trans->valu")
        if c.valu and c.m.startswith(("v_readlane", "v_readfirstlane")) and vw & c.r: up(1, "valu->readlane")
        if c.valu and c.m.startswith("v_permlane") and vw & c.r: up(2, "valu->permlane")
        if c.valu and c.dpp and vw & c.r: up(2, "valu->dpp")
        if sw:
            if c.valu and sw & c.r: up(4 if c.m.startswith(("v_readlane", "v_writelane")) else 2, "valu sgpr->valu")
            if c.vmem and sw & c.r: up(5, "valu sgpr->vmem")
        if p.dot and (c.valu or c.mfma or c.vmem or c.ds) and vw & (c.r | c.w):
            same = c.m == p.m
            if same:
                srcs = set()
                for o in c.ops[1:3]: srcs |= regs_of(o)
                if vw & srcs: up(3, "dot->dot srcAB")
            else: up(3, "dot->other")
        if ("sdwa" in p.m or "op_sel:" in p.mods) and not p.m.startswith("v_pk") and c.valu and vw & (c.r | c.w): up(1, "sdwa/opsel")
    if p.mfma:
        t = {2: 0, 4: 1, 8: 2, 16: 3}[p.p]
        if c.mfma:
            if p.w & c.srcC:
                if p.w == c.srcC and p.p == c.p: up([2, 0, 0, 0][t], "mfma->C exact")
                else: up([4, 6, 10, 18][t], "mfma->C overlap")
            if p.w & c.srcAB: up([5, 8, 12, 20][t], "mfma->AB")
            if p.w & c.w and not (p.w & c.srcC): up([4, 6, 10, 18][t] if p.p > c.p else 0, "mfma WAW")
        elif (c.valu or c.vmem or c.ds) and p.w & (c.r | c.w): up([5, 8, 12, 20][t], "mfma->valu/mem")
        if c.valu and p.srcC & c.w: up([1, 3, 7, 15][t], "mfma C WAR")
    if p.salu and ("s", "m0") in p.w and c.ldsdma: up(1, "m0->ldsdma")
    if p.widestore and p.sdata & c.w: up(2 if c.valu else 1, "store data WAR")
    return best
def check_hazards(kern):
    ins, labels = [], {}
    for l in kern.L:
        if l.endswith(":"): labels[l[:-1]] = len(ins); continue
        if l.startswith((".", ";")): continue
        ins.append(Ins(l))
    n = len(ins)
    preds = [[] for _ in range(n + 1)]
    for i, x in enumerate(ins):
        if x.m.startswith(("s_branch", "s_cbranch")):
            preds[labels[x.ops[0]]].append(i)
        if x.m not in ("s_branch", "s_endpgm"): preds[i + 1].append(i)
    errs = []
    for i, c in enumerate(ins):
        if c.salu: continue
        stack = [(p, 0) for p in preds[i]]
        seen = {}
        while stack:
            j, d = stack.pop()
            if d >= 20 or seen.get(j, 99) <= d: continue
            seen[j] = d
            k, why = need(ins[j], c)
            if k > d: errs.append(f"{kern.name}: need {k} have {d} ({why}): [{ins[j].line}] -> [{c.line}]")
            for p in preds[j]: stack.append((p, d + ins[j].ws))
    for x in ins:
        for (k, r) in x.r | x.w:
            if k == "v" and r >= kern.vgpr: errs.append(f"{kern.name}: v{r} >= vgpr budget {kern.vgpr}: {x.line}")
            if k == "a" and r >= kern.agpr: errs.append(f"{kern.name}: a{r} >= agpr budget {kern.agpr}: {x.line}")
            if k == "s" and isinstance(r, int) and r >= kern.sgpr: errs.append(f"{kern.name}: s{r} >= sgpr budget: {x.line}")
    return errs
```

```python
import sys, math
from asmlib import *

NAME = "adaLN_cond__grouped_kv_mqa__dense_activation_silu__prompt"
KA = dict(x=0, wq=8, wk=16, wv=24, wo=32, w1=48, w2=56, c=64, wmod=72, out=80, dbg=88, ws=96)
MODP, STATS, KV, QM, QT, OB, X1, Y2, HB, WSEND = 0, 0x10000, 0x30000, 0x100000, 0x300000, 0x400000, 0x700000, 0xA00000, 0xD00000, 0x1400000
STEP = 5248
LOG2E = 1.4426950408889634
def f32(x):
    import struct
    return hex(struct.unpack("<I", struct.pack("<f", x))[0])
QSCALE = LOG2E / math.sqrt(20.0)

def guard(k, n):
    k(f"s_cmp_ge_u32 s2, {n}\ns_cbranch_scc1 L_{k.name}_end")
def finish(k):
    k(f"L_{k.name}_end:\ns_endpgm")
def ld_ptr(k, sreg, name): k(f"s_load_dwordx2 {s(sreg,2)}, s[0:1], {KA[name]}")
def bf16_round(k, dst, src, tmp):
    k(f"v_cvt_pk_bf16_f32 {v(tmp)}, {v(src)}, {v(src)}\nv_lshlrev_b32 {v(dst)}, 16, {v(tmp)}")
def reduce_G(k, x, t):
    k(f"""v_mov_b32 {v(t)}, {v(x)}
    s_nop 1
    v_permlane16_swap_b32 {v(x)}, {v(t)}
    s_nop 0
    v_add_f32 {v(x)}, {v(x)}, {v(t)}
    v_mov_b32 {v(t)}, {v(x)}
    s_nop 1
    v_permlane32_swap_b32 {v(x)}, {v(t)}
    s_nop 0
    v_add_f32 {v(x)}, {v(x)}, {v(t)}""")

def k_mod():
    k = Kern("k1mod_kernel", vgpr=64)
    guard(k, 240)
    k("s_load_dwordx4 s[4:7], s[0:1], 64"); ld_ptr(k, 8, "ws")
    k("""s_mul_i32 s3, s2, 1093
    s_lshr_b32 s3, s3, 16
    s_mul_i32 s10, s3, 60
    s_sub_u32 s10, s2, s10
    v_lshrrev_b32 v1, 3, v0
    v_and_b32 v2, 7, v0
    s_mul_i32 s11, s3, 160
    v_add_u32 v1, s11, v1
    v_mul_u32_u24 v3, 7680, v1
    v_lshl_add_u32 v3, v2, 4, v3
    s_lshl_b32 s12, s10, 7
    v_lshlrev_b32 v4, 1, v1
    s_waitcnt lgkmcnt(0)""")
    k.srd(16, 4, 1280); k.srd(20, 6, 640 * 7680); k.srd(24, 8, WSEND)
    for i in range(5): k(f"buffer_load_ushort v{28+i}, v4, s[16:19], 0 offen offset:{64*i}")
    tc = k.vm_ticket()
    tw = []
    for i in range(5):
        k(f"buffer_load_dwordx4 {v(8+4*i,4)}, v3, s[20:23], s12 offen"); tw.append(k.vm_ticket())
        if i < 4: k("s_add_u32 s12, s12, 245760")
    for j in range(8): k(f"v_mov_b32 v{40+j}, 0")
    k.wait_vm(tc)
    for i in range(5):
        c = 28 + i
        k(f"""v_lshlrev_b32 v{c}, 16, v{c}
        v_mul_f32 v34, {f32(-LOG2E)}, v{c}
        v_exp_f32 v34, v34
        s_nop 0
        v_add_f32 v34, 1.0, v34
        v_rcp_f32 v34, v34
        s_nop 0
        v_mul_f32 v{c}, v{c}, v34""")
        bf16_round(k, c, c, 34)
    for i in range(5):
        k.wait_vm(tw[i])
        for j in range(4):
            w = 8 + 4*i + j
            k(f"""v_lshlrev_b32 v34, 16, v{w}
            v_and_b32 v35, 0xffff0000, v{w}
            v_fmac_f32 v{40+2*j}, v{28+i}, v34
            v_fmac_f32 v{41+2*j}, v{28+i}, v35""")
    k("""v_lshlrev_b32 v5, 5, v0
    ds_write_b128 v5, v[40:43]
    ds_write_b128 v5, v[44:47] offset:16
    s_waitcnt lgkmcnt(0)
    s_barrier
    v_cmp_gt_u32 vcc, 64, v0
    s_and_saveexec_b64 s[28:29], vcc
    s_cbranch_execz L_k1mod_kernel_end
    v_lshlrev_b32 v5, 2, v0""")
    for i in range(16): k(f"ds_read2st64_b32 {v(8+2*i,2)}, v5 offset0:{2*i} offset1:{2*i+1}")
    k("s_waitcnt lgkmcnt(0)")
    for st in (16, 8, 4, 2, 1):
        for i in range(st): k(f"v_add_f32 v{8+i}, v{8+i}, v{8+st+i}")
    k(f"""s_mul_i32 s3, s3, {3840*4}
    s_lshl_b32 s10, s10, 8
    s_add_u32 s3, s3, s10
    buffer_store_dword v8, v5, s[24:27], s3 offen offset:{MODP}
    s_waitcnt vmcnt(0)""")
    finish(k)
    return k, 240, 256, 8192

def lane_setup(k, vl, vn, vG, swave):
    k(f"""v_and_b32 {v(vl)}, 63, v0
    v_lshrrev_b32 {v(vG)}, 6, v0
    v_and_b32 {v(vn)}, 15, v0
    v_readfirstlane_b32 {s(swave)}, {v(vG)}
    v_lshrrev_b32 {v(vG)}, 4, {v(vl)}""")
def dma_voffs(k, vl, dst, nj, ppr, magic, rowbytes, t0, t1):
    for j in range(nj):
        k(f"""v_add_u32 {v(t0)}, {64*j}, {v(vl)}
        v_mul_u32_u24 {v(t1)}, {magic}, {v(t0)}
        v_lshrrev_b32 {v(t1)}, 16, {v(t1)}
        v_mul_u32_u24 {v(dst+j)}, {ppr}, {v(t1)}
        v_sub_u32 {v(t0)}, {v(t0)}, {v(dst+j)}
        v_lshlrev_b32 {v(t0)}, 4, {v(t0)}""")
        k(f"""v_and_b32 {v(dst+j)}, 0x13, {v(t1)}
        v_lshlrev_b32 {v(t1+1)}, 1, {v(t1)}
        v_and_b32 {v(t1+1)}, 8, {v(t1+1)}
        v_or_b32 {v(dst+j)}, {v(dst+j)}, {v(t1+1)}
        v_lshrrev_b32 {v(t1+1)}, 1, {v(t1)}
        v_and_b32 {v(t1+1)}, 4, {v(t1+1)}
        v_or_b32 {v(dst+j)}, {v(dst+j)}, {v(t1+1)}
        v_mul_u32_u24 {v(dst+j)}, {rowbytes}, {v(dst+j)}
        v_add_u32 {v(dst+j)}, {v(dst+j)}, {v(t0)}""")
def tr_addr(k, vl, vG, dst, RB, t0, t1, base=0):
    k(f"""v_lshrrev_b32 {v(t0)}, 1, {v(vG)}
    v_lshlrev_b32 {v(t0)}, 4, {v(t0)}
    v_and_b32 {v(t1)}, 1, {v(vG)}
    v_lshl_add_u32 {v(t0)}, {v(t1)}, 2, {v(t0)}
    v_bfe_u32 {v(t1)}, {v(vl)}, 2, 2
    v_add_u32 {v(t0)}, {v(t0)}, {v(t1)}
    v_mul_u32_u24 {v(t0)}, {RB}, {v(t0)}
    v_and_b32 {v(t1)}, 3, {v(vl)}
    v_lshl_add_u32 {v(dst)}, {v(t1)}, 3, {v(t0)}""")
    if base: k(f"v_add_u32 {v(dst)}, {base}, {v(dst)}")
def tr_read(k, dst, addr_regs, byteoff, RB):
    hi = byteoff + 8 * RB
    win = hi // 65536 if byteoff // 65536 == hi // 65536 else None
    for (d, o) in ((dst, byteoff), (dst + 2, hi)):
        w = o // 65536
        k(f"ds_read_b64_tr_b16 {v(d,2)}, {v(addr_regs[w])} offset:{o - w*65536}")
def mod_vec(k, col0, dst, voff, ssrd, t, plus1):
    for p in range(4):
        d = dst if p == 0 else t + 8 * (p - 1)
        k(f"s_mov_b32 s40, {MODP + (p*3840 + col0)*4}")
        k(f"buffer_load_dwordx4 {v(d,4)}, {v(voff)}, {s(ssrd,4)}, s40 offen")
        k(f"buffer_load_dwordx4 {v(d+4,4)}, {v(voff)}, {s(ssrd,4)}, s40 offen offset:16")
    return k.vm_ticket()
def mod_fin(k, dst, t, n=8):
    for i in range(n):
        k(f"""v_add_f32 {v(dst+i)}, {v(dst+i)}, {v(t+i)}
        v_add_f32 {v(t+8+i)}, {v(t+8+i)}, {v(t+16+i)}""")
    for i in range(n):
        k(f"v_add_f32 {v(dst+i)}, {v(dst+i)}, {v(t+8+i)}")
    for i in range(n): bf16_round(k, dst + i, dst + i, t + i)

def tile_map(k, ntb_per_xcd, stb, sj):
    sh = int(math.log2(ntb_per_xcd))
    k(f"""s_and_b32 {s(stb)}, s2, 7
    s_lshl_b32 {s(stb)}, {s(stb)}, {sh}
    s_lshr_b32 {s(sj)}, s2, 3
    s_and_b32 s3, {s(sj)}, {ntb_per_xcd-1}
    s_add_u32 {s(stb)}, {s(stb)}, s3
    s_lshr_b32 {s(sj)}, {s(sj)}, {sh}""")

def k_qkv():
    k = Kern("k2qkv_kernel", vgpr=232)
    L_WM, L_KV, L_MOD = 0, 102400, 122880
    guard(k, 256)
    k("s_load_dwordx4 s[4:7], s[0:1], 0\ns_load_dwordx4 s[8:11], s[0:1], 16"); ld_ptr(k, 12, "ws")
    stb, sj, sw = 14, 15, 16
    tile_map(k, 4, stb, sj)
    vl, vn, vG = 1, 2, 3
    lane_setup(k, vl, vn, vG, sw)
    X, ACC, AF = 16, 96, 120
    k(f"""s_lshl_b32 s17, s{stb}, 6
    s_lshl_b32 s18, s{sw}, 4
    s_add_u32 s17, s17, s18
    v_add_u32 v4, s17, v{vn}
    v_mul_u32_u24 v5, 1280, v4
    v_lshl_add_u32 v5, v{vG}, 4, v5
    s_waitcnt lgkmcnt(0)""")
    k.srd(20, 4, 2048 * 1280); k.srd(24, 6, 640 * 1280); k.srd(28, 12, WSEND)
    for st in range(20): k(f"buffer_load_dwordx4 {v(X+4*st,4)}, v5, s[20:23], 0 offen offset:{64*st}")
    tx = k.vm_ticket()
    MD = 168
    k(f"v_lshlrev_b32 v6, 5, v0")
    tm = mod_vec(k, 0, MD, 6, 28, MD + 8, False)
    VO = 8
    dma_voffs(k, vl, VO, 5, 10, 6554, 1280, 13, 14)
    k(f"""s_mul_i32 s33, s{sj}, 160
    s_mul_i32 s34, s{sw}, {32*1280}
    s_add_u32 s33, s33, s34
    s_mul_i32 s34, s{sw}, 5120
    s_add_u32 m0, s34, {L_WM}""")
    for c in range(5):
        for j in range(5):
            k(f"s_nop 0\nbuffer_load_dwordx4 v{VO+j}, s[24:27], s33 offen lds")
            k(f"s_add_u32 m0, m0, {1024 if j < 4 else 20480 - 4096}")
        k(f"s_add_u32 s33, s33, {128*1280}")
    KW = 200
    k(f"""v_and_b32 v13, 3, v0
    s_min_u32 s34, s{sj}, 2
    s_lshl_b32 s34, s34, 2
    v_add_u32 v13, s34, v13
    v_min_u32 v13, 9, v13
    v_cmp_gt_u32 vcc, 5, v13
    v_subrev_u32 v14, 5, v13
    v_mov_b32 v222, s8
    v_mov_b32 v223, s9
    v_mov_b32 v224, s10
    v_mov_b32 v225, s11
    v_cndmask_b32 v13, v14, v13, vcc
    v_cndmask_b32 v222, v224, v222, vcc
    v_cndmask_b32 v223, v225, v223, vcc
    v_lshrrev_b32 v14, 2, v0
    v_and_b32 v224, 0x33, v14
    v_lshlrev_b32 v225, 1, v14
    v_and_b32 v225, 8, v225
    v_or_b32 v224, v224, v225
    v_lshrrev_b32 v225, 1, v14
    v_and_b32 v225, 4, v225
    v_or_b32 v224, v224, v225
    v_mul_u32_u24 v224, 40, v224
    v_lshl_add_u32 v224, v13, 3, v224
    v_add_co_u32 v222, vcc, v222, v224
    s_nop 1
    v_addc_co_u32 v223, vcc, 0, v223, vcc""")
    for i in range(10):
        k(f"global_load_dwordx2 {v(KW+2*i,2)}, v[222:223], off offset:{2560*(i&1)}")
        if i & 1 and i < 9:
            k("v_add_co_u32 v222, vcc, 5120, v222\ns_nop 1\nv_addc_co_u32 v223, vcc, 0, v223, vcc")
    tkw = k.vm_ticket()
    k.wait_vm(tm)
    mod_fin(k, MD, MD + 8)
    k("v_cmp_le_u32 vcc, 80, v0")
    for i in range(8):
        k(f"v_add_f32 v{MD+8+i}, 1.0, v{MD+i}")
        bf16_round(k, MD + 8 + i, MD + 8 + i, MD + 16)
        k(f"v_cndmask_b32 v{MD+i}, v{MD+i}, v{MD+8+i}, vcc")
    lab = k.label("nomod")
    k(f"""v_add_u32 v6, {L_MOD}, v6
    v_cmp_gt_u32 vcc, 160, v0
    s_and_saveexec_b64 s[36:37], vcc
    s_cbranch_execz {lab}
    ds_write_b128 v6, {v(MD,4)}
    ds_write_b128 v6, {v(MD+4,4)} offset:16
    {lab}:
    s_mov_b64 exec, s[36:37]""")
    S1, S2 = MD, MD + 4
    k(f"s_mov_b32 s35, 0x3f803f80")
    for i in range(8): k(f"v_mov_b32 v{MD+i}, 0")
    for r in range(80):
        k(f"v_dot2_f32_bf16 v{S1+(r&3)}, v{X+r}, s35, v{S1+(r&3)}\nv_dot2_f32_bf16 v{S2+(r&3)}, v{X+r}, v{X+r}, v{S2+(r&3)}")
    k(f"""s_nop 2
    v_add_f32 v{S1}, v{S1}, v{S1+1}
    v_add_f32 v{S1+2}, v{S1+2}, v{S1+3}
    v_add_f32 v{S2}, v{S2}, v{S2+1}
    v_add_f32 v{S2+2}, v{S2+2}, v{S2+3}
    v_add_f32 v{S1}, v{S1}, v{S1+2}
    v_add_f32 v{S2}, v{S2}, v{S2+2}""")
    reduce_G(k, S1, S1 + 1); reduce_G(k, S2, S2 + 1)
    RS, NM = MD + 8, MD + 10
    k(f"""v_mul_f32 v{S1}, {f32(1/640)}, v{S1}
    v_mul_f32 v{S2}, {f32(1/640)}, v{S2}
    v_fma_f32 v{S2}, -v{S1}, v{S1}, v{S2}
    v_max_f32 v{S2}, 0, v{S2}
    v_add_f32 v{S2}, {f32(1e-5)}, v{S2}
    v_rsq_f32 v{RS}, v{S2}
    s_nop 0
    v_mov_b32 v{RS+1}, v{RS}
    v_mul_f32 v{NM}, -v{S1}, v{RS}
    v_mul_f32 v{NM+1}, -v{S1}, v{RS}""")
    k.wait_vm(tkw)
    k(f"v_lshlrev_b32 v13, 3, v0\nv_add_u32 v13, {L_KV}, v13")
    for i in range(10): k(f"ds_write_b64 v13, {v(KW+2*i,2)} offset:{2048*i}")
    k("s_waitcnt lgkmcnt(0)\ns_barrier")
    k(f"v_lshlrev_b32 v13, 5, v{vG}\nv_add_u32 v13, {L_MOD}, v13")
    GB = [AF, AF + 16]
    T = MD + 12
    def ldmod(st):
        b = GB[st & 1]
        k(f"""ds_read_b128 {v(b,4)}, v13 offset:{128*st}
        ds_read_b128 {v(b+4,4)}, v13 offset:{128*st+16}
        ds_read_b128 {v(b+8,4)}, v13 offset:{2560+128*st}
        ds_read_b128 {v(b+12,4)}, v13 offset:{2560+128*st+16}""")
        return k.lg_ticket()
    tk = ldmod(0)
    for st in range(20):
        nxt = ldmod(st + 1) if st < 19 else None
        k.wait_lg(tk); tk = nxt
        b = GB[st & 1]
        for r in range(4):
            x = X + 4*st + r; t = T + 2 * r
            k(f"v_lshlrev_b32 v{t}, 16, v{x}\nv_and_b32 v{t+1}, 0xffff0000, v{x}")
        for r in range(4):
            t = T + 2 * r
            k(f"v_pk_fma_f32 {v(t,2)}, {v(t,2)}, {v(RS,2)}, {v(NM,2)}")
        for r in range(4):
            t = T + 2 * r
            k(f"v_pk_fma_f32 {v(t,2)}, {v(t,2)}, {v(b+8+2*r,2)}, {v(b+2*r,2)}")
        for r in range(4):
            x = X + 4*st + r; t = T + 2 * r
            k(f"v_cvt_pk_bf16_f32 v{x}, v{t}, v{t+1}")
    AM, AK = 8, 10
    tr_addr(k, vl, vG, AM, 160, 13, 14)
    k(f"v_add_u32 v{AM+1}, 65536, v{AM}")
    tr_addr(k, vl, vG, AK, 32, 13, 14, base=L_KV)
    def ldA(st):
        b = AF + 24 * (st & 1)
        for t in range(5): tr_read(k, b + 4*t, [AM, AM+1], L_WM + st*5120 + t*32, 160)
        tr_read(k, b + 20, [AK], st * 1024, 32)
        return k.lg_ticket()
    tk = ldA(0)
    for st in range(20):
        k.wait_lg(tk)
        if st < 19: tk = ldA(st + 1)
        b = AF + 24 * (st & 1)
        for t in range(6):
            c = "0" if st == 0 else v(ACC+4*t, 4)
            k(f"v_mfma_f32_16x16x32_bf16 {v(ACC+4*t,4)}, {v(b+4*t,4)}, {v(X+4*st,4)}, {c}")
    T = X
    for t in range(5):
        k(f"""v_add_u32 v13, {4*t}, v{vG}
        v_mul_u32_u24 v14, 13108, v13
        v_lshrrev_b32 v14, 16, v14
        v_mul_u32_u24 v15, 5, v14
        v_sub_u32 v13, v13, v15
        s_lshl_b32 s34, s{sj}, 2
        v_add_u32 v14, s34, v14
        v_lshl_add_u32 v14, v14, 11, v4
        v_lshlrev_b32 v15, 5, v14
        v_lshl_add_u32 v15, v13, 3, v15
        v_lshlrev_b32 v14, 3, v14
        v_add_u32 v14, {QT-QM}, v14
        v_cmp_eq_u32 vcc, 4, v13
        s_nop 1
        v_cndmask_b32 v{T+8+t}, v15, v14, vcc""")
    k(f"s_mov_b32 s34, {QM}\ns_mov_b32 s35, {f32(QSCALE)}")
    for t in range(5):
        A_ = ACC + 4*t
        for i in range(4): k(f"v_mul_f32 v{A_+i}, s35, v{A_+i}")
        k(f"""v_cvt_pk_bf16_f32 v{A_}, v{A_}, v{A_+1}
        v_cvt_pk_bf16_f32 v{A_+1}, v{A_+2}, v{A_+3}
        buffer_store_dwordx2 {v(A_,2)}, v{T+8+t}, s[28:31], s34 offen""")
    k(f"s_cmp_ge_u32 s{sj}, 3\ns_cbranch_scc1 L_{k.name}_end")
    A_ = ACC + 20
    k(f"""s_lshl_b32 s34, s{sj}, 2
    v_add_u32 v13, s34, v{vG}
    v_cvt_pk_bf16_f32 v{A_}, v{A_}, v{A_+1}
    v_cvt_pk_bf16_f32 v{A_+1}, v{A_+2}, v{A_+3}
    s_mul_i32 s34, s{stb}, {STEP}
    s_add_u32 s34, s34, {KV}
    v_and_b32 v14, 63, v4""")
    k(f"""v_lshrrev_b32 v15, 5, v14
    v_lshlrev_b32 v15, 10, v15
    v_lshrrev_b32 v{T}, 1, v13
    v_lshl_add_u32 v15, v{T}, 9, v15
    v_and_b32 v{T}, 31, v14
    v_lshl_add_u32 v15, v{T}, 4, v15
    v_and_b32 v{T}, 1, v13
    v_lshl_add_u32 v15, v{T}, 3, v15
    v_lshlrev_b32 v{T}, 3, v14
    v_add_u32 v{T}, 2048, v{T}
    v_cmp_eq_u32 vcc, 4, v13
    s_nop 1
    v_cndmask_b32 v15, v15, v{T}, vcc
    v_cmp_gt_u32 vcc, 5, v13
    s_and_saveexec_b64 s[36:37], vcc
    s_cbranch_execz L_k2_nok
    buffer_store_dwordx2 {v(A_,2)}, v15, s[28:31], s34 offen
    L_k2_nok:
    s_mov_b64 exec, s[36:37]""")
    k(f"""v_lshrrev_b32 v15, 3, v14
    v_mul_u32_u24 v15, 336, v15
    v_and_b32 v{T}, 7, v14
    v_lshl_add_u32 v15, v{T}, 1, v15
    v_subrev_u32 v{T}, 5, v13
    v_lshl_add_u32 v15, v{T}, 6, v15
    v_add_u32 v15, 2560, v15
    v_cmp_eq_u32 vcc, 10, v13
    v_mov_b32 v{T}, 0x3f80
    s_nop 0
    v_cndmask_b32 v{A_}, v{A_}, v{T}, vcc
    v_cmp_le_u32 vcc, 5, v13
    v_cmp_ge_u32 s[38:39], 10, v13
    s_and_b64 vcc, vcc, s[38:39]
    s_and_saveexec_b64 s[36:37], vcc
    s_cbranch_execz L_{k.name}_end
    buffer_store_short v{A_}, v15, s[28:31], s34 offen
    v_cmp_ge_u32 vcc, 9, v13
    s_and_saveexec_b64 s[36:37], vcc
    s_cbranch_execz L_{k.name}_end
    buffer_store_short_d16_hi v{A_}, v15, s[28:31], s34 offen offset:16
    buffer_store_short v{A_+1}, v15, s[28:31], s34 offen offset:32
    buffer_store_short_d16_hi v{A_+1}, v15, s[28:31], s34 offen offset:48""")
    finish(k)
    return k, 256, 256, L_MOD + 5120

CH = 8 * STEP
def k_attn():
    k = Kern("k3att_kernel", vgpr=184)
    guard(k, 256)
    ld_ptr(k, 12, "ws")
    stb, sj, sw = 14, 15, 16
    tile_map(k, 4, stb, sj)
    IDX, AK, AT, AV, VL = 4, 5, 6, 7, 1
    S = [16, 48]; O = [80, 96]; Q = [112, 118]; F = [124, 150]
    k(f"""v_and_b32 v{VL}, 63, v0
    v_lshrrev_b32 v2, 6, v0
    v_and_b32 v3, 31, v0
    v_readfirstlane_b32 s{sw}, v2
    v_lshrrev_b32 v2, 5, v{VL}
    v_lshlrev_b32 v{AK}, 4, v{VL}
    s_waitcnt lgkmcnt(0)""")
    k.srd(28, 12, WSEND)
    def dma_chunk(sbase_lds, sbase_src):
        k(f"s_lshl_b32 s41, s{sw}, 10")
        for i in range(11):
            if i == 10: k("s_min_u32 s41, s41, 40960")
            k(f"""s_add_u32 m0, s41, {sbase_lds}
            s_add_u32 s42, s41, {sbase_src}
            buffer_load_dwordx4 v{AK}, s[28:31], s42 offen lds""")
            if i < 10: k("s_add_u32 s41, s41, 4096")
    dma_chunk(0, KV)
    t0 = k.vm_ticket()
    k(f"""s_lshl_b32 s34, s{sj}, 2
    s_add_u32 s34, s34, s{sw}
    s_lshl_b32 s35, s34, 11
    s_lshl_b32 s36, s{stb}, 6
    s_add_u32 s35, s35, s36
    v_add_u32 v8, s35, v3
    v_lshlrev_b32 v9, 5, v8
    v_lshl_add_u32 v9, v2, 4, v9
    v_lshlrev_b32 v8, 3, v8
    s_mov_b32 s37, {QM}
    s_mov_b32 s38, {QT}
    buffer_load_dwordx4 {v(Q[0],4)}, v9, s[28:31], s37 offen
    buffer_load_dwordx2 {v(Q[0]+4,2)}, v8, s[28:31], s38 offen
    buffer_load_dwordx4 {v(Q[1],4)}, v9, s[28:31], s37 offen offset:1024
    buffer_load_dwordx2 {v(Q[1]+4,2)}, v8, s[28:31], s38 offen offset:256""")
    tq = k.vm_ticket()
    dma_chunk(CH, KV + CH); dma_chunk(2 * CH, KV + 2 * CH)
    k(f"""v_mov_b32 v{IDX}, 0xdddd
    v_lshlrev_b32 v{AT}, 3, v{VL}
    v_add_u32 v{AT}, 2048, v{AT}
    v_min_u32 v10, 20, v3
    v_cmp_le_u32 vcc, 28, v3
    v_mul_u32_u24 v11, 336, v2
    v_add_u32 v11, 2560, v11
    v_cndmask_b32 v10, v10, 4, vcc
    v_lshl_add_u32 v{AV}, v10, 4, v11
    v_mov_b32 v12, v{AK}""")
    for i in range(32): k(f"v_mov_b32 v{O[0]+i}, 0")
    for i in range(8): k(f"v_mov_b32 v{S[1]+24+i}, 0")
    for i in range(4): k(f"v_mov_b32 v{F[1]+22+i}, 0")
    exp = lambda r: f"v_exp_f32 v{r}, v{r}"
    smf = lambda o, vv, b: f"v_smfmac_f32_32x32x32_bf16 {v(o,16)}, {v(vv,4)}, {v(b,8)}, v{IDX}"
    m16 = lambda sd, kk, q: f"v_mfma_f32_32x32x16_bf16 {v(sd,16)}, {v(kk,4)}, {v(q,4)}, {v(sd,16)}"
    m2b = lambda sd, kk, q: f"v_mfma_f32_32x32x4_2b_bf16 {v(sd,32)}, {v(kk,2)}, {v(q,2)}, 0"
    def frag_loads(f, off):
        return [f"ds_read_b128 {v(f,4)}, v{AK} offset:{off}", f"ds_read_b128 {v(f+4,4)}, v{AK} offset:{off+1024}",
                f"ds_read_b64 {v(f+8,2)}, v{AT} offset:{off}"] + \
               [f"ds_read_b128 {v(f+10+4*i,4)}, v{AV} offset:{off+672*i}" for i in range(4)]
    k.wait_vm(tq)
    k("s_barrier")
    for l in frag_loads(F[0], 0): k(l)
    k("s_waitcnt lgkmcnt(0)")
    k(m2b(S[0], F[0] + 8, Q[0] + 4)); k("s_nop 15\ns_nop 1")
    k(m16(S[0], F[0], Q[0])); k(m16(S[0] + 16, F[0] + 4, Q[0]))
    k("s_mov_b32 s33, 0\ns_nop 9")
    P = dict(s3=2, t=5, s0=13, s1=18, m0=22, s2=26, m1=30)
    def phase(q, fV, fVprev, fK, extra):
        X, Y = S[q], S[1 - q]
        ins = {P["s3"]: [smf(O[1-q], fVprev + 22, Y + 24)],
               P["t"]: [m2b(Y, fK + 8, Q[1-q] + 4)] + extra,
               P["s0"]: [smf(O[q], fV + 10, X)], P["s1"]: [smf(O[q], fV + 14, X + 8)],
               P["m0"]: [m16(Y, fK, Q[1-q])], P["s2"]: [smf(O[q], fV + 18, X + 16)],
               P["m1"]: [m16(Y + 16, fK + 4, Q[1-q])]}
        for i in range(32):
            for l in ins.get(i, []): k(l)
            k(exp(X + i))
    k(".p2align 6\nL_att_loop:")
    phase(0, F[0], F[1], F[0], frag_loads(F[1], STEP))
    k("s_waitcnt lgkmcnt(0)")
    phase(1, F[0], F[0], F[1], [])
    k(f"""s_add_u32 s33, s33, 1
    s_mov_b32 s39, {2*STEP}
    s_and_b32 s40, s33, 3
    s_cmp_lg_u32 s40, 0
    s_cbranch_scc1 L_att_nobar
    s_waitcnt vmcnt(0)
    s_barrier
    s_cmp_eq_u32 s33, 12
    s_cselect_b32 s39, {(2*STEP - 3*CH) & 0xffffffff}, s39
    s_cmp_lg_u32 s33, 4
    s_cbranch_scc1 L_att_nobar
    L_att_dma3:""")
    AKsave = AK
    k(f"s_lshl_b32 s41, s{sw}, 10")
    for i in range(11):
        if i == 10: k("s_min_u32 s41, s41, 40960")
        k(f"""s_add_u32 m0, s41, 0
        s_add_u32 s42, s41, {KV + 3*CH}
        buffer_load_dwordx4 v12, s[28:31], s42 offen lds""")
        if i < 10: k("s_add_u32 s41, s41, 4096")
    k(f"""L_att_nobar:
    v_add_u32 v{AK}, s39, v{AK}
    v_add_u32 v{AT}, s39, v{AT}
    v_add_u32 v{AV}, s39, v{AV}""")
    phase(0, F[1], F[0], F[1], frag_loads(F[0], 0))
    k("s_waitcnt lgkmcnt(0)")
    phase(1, F[1], F[1], F[0], [])
    k("s_cmp_lt_u32 s33, 16\ns_cbranch_scc1 L_att_loop")
    k("s_nop 1"); k(smf(O[1], F[1] + 22, S[1] + 24))
    k("s_mov_b32 s43, 0")
    k("L_att_epi:\ns_nop 11")
    LL = [8, 9]
    k("v_cmp_eq_u32 s[44:45], 1, v2\nv_mov_b32 v10, 0\ns_nop 0")
    for q in range(2):
        k(f"v_cndmask_b32 v{LL[q]}, v{O[q]+12}, v{O[q]+8}, s[44:45]")
        for i in range(12): k(f"v_fmac_f32 v10, 0, v{O[q]+i}")
    k(f"""s_cmp_lg_u32 s43, 0
    s_cbranch_scc1 L_att_store
    v_min_f32 v11, v8, v9
    v_max_f32 v13, v8, v9
    v_cmp_eq_f32 vcc, 0, v10
    v_cmp_le_f32 s[46:47], {f32(2.0**-20)}, v11""".replace(f"s[46:47], {f32(2.0**-20)}, v11", "s[46:47], s48, v11").replace("v_min_f32 v11", f"s_mov_b32 s48, {f32(2.0**-20)}\ns_mov_b32 s49, {f32(2.0**60)}\nv_min_f32 v11"))
    k(f"""s_and_b64 vcc, vcc, s[46:47]
    v_cmp_ge_f32 s[46:47], s49, v13
    s_and_b64 vcc, vcc, s[46:47]
    s_cmp_eq_u64 vcc, -1
    s_cbranch_scc0 L_att_slow
    L_att_store:""")
    k(f"""s_lshl_b32 s36, s{stb}, 6
    v_add_u32 v10, s36, v3
    v_mul_u32_u24 v10, 1280, v10
    v_lshl_add_u32 v10, v2, 3, v10
    s_mul_i32 s35, s34, 40
    s_add_u32 s35, s35, {OB}
    v_rcp_f32 v8, v8
    v_rcp_f32 v9, v9
    s_add_u32 s36, s35, {32*1280}""")
    for q in range(2):
        for i in range(12): k(f"v_mul_f32 v{O[q]+i}, v{LL[q]}, v{O[q]+i}")
        for i in range(6): k(f"v_cvt_pk_bf16_f32 v{O[q]+i}, v{O[q]+2*i}, v{O[q]+2*i+1}")
    for q in range(2):
        k(f"""buffer_store_dwordx2 {v(O[q],2)}, v10, s[28:31], s{35+q} offen
        buffer_store_dwordx2 {v(O[q]+2,2)}, v10, s[28:31], s{35+q} offen offset:16""")
    k("s_mov_b32 exec_hi, 0")
    for q in range(2):
        k(f"buffer_store_dwordx2 {v(O[q]+4,2)}, v10, s[28:31], s{35+q} offen offset:32")
    k("s_endpgm")
    k(f"""L_att_slow:
    v_lshlrev_b32 v{AK}, 4, v{VL}
    v_lshlrev_b32 v{AT}, 3, v{VL}
    v_min_u32 v10, 20, v3
    v_mul_u32_u24 v11, 336, v2
    v_lshl_add_u32 v{AV}, v10, 4, v11
    v_mov_b32 v8, 0xff800000
    v_mov_b32 v9, 0xff800000""")
    def gl_k(f):
        k(f"""buffer_load_dwordx4 {v(f,4)}, v{AK}, s[28:31], s40 offen
        buffer_load_dwordx4 {v(f+4,4)}, v{AK}, s[28:31], s40 offen offset:1024
        buffer_load_dwordx2 {v(f+8,2)}, v{AT}, s[28:31], s40 offen offset:2048""")
    def qk(q, f):
        k(m2b(S[q], f + 8, Q[q] + 4)); k("s_nop 15\ns_nop 1")
        k(m16(S[q], f, Q[q])); k(m16(S[q] + 16, f + 4, Q[q])); k("s_nop 11")
    k(f"s_mov_b32 s40, {KV}\nL_att_slow1:")
    gl_k(F[0]); k("s_waitcnt vmcnt(0)")
    for q in range(2):
        qk(q, F[0])
        for i in range(16): k(f"v_max3_f32 v{8+q}, v{S[q]+2*i}, v{S[q]+2*i+1}, v{8+q}")
    k(f"s_add_u32 s40, s40, {STEP}\ns_cmp_lt_u32 s40, {KV + 32*STEP}\ns_cbranch_scc1 L_att_slow1")
    for q in range(2):
        k(f"""v_mov_b32 v10, v{8+q}
        s_nop 1
        v_permlane32_swap_b32 v{8+q}, v10
        s_nop 0
        v_max_f32 v{8+q}, v{8+q}, v10""")
    for i in range(32): k(f"v_mov_b32 v{O[0]+i}, 0")
    k(f"s_mov_b32 s40, {KV}\nL_att_slow2:")
    gl_k(F[0])
    k("s_add_u32 s41, s40, 2560")
    for i in range(4): k(f"buffer_load_dwordx4 {v(F[0]+10+4*i,4)}, v{AV}, s[28:31], s41 offen offset:{672*i}")
    k("s_waitcnt vmcnt(0)")
    for q in range(2):
        qk(q, F[0])
        for i in range(32): k(f"v_sub_f32 v{S[q]+i}, v{S[q]+i}, v{8+q}")
        for i in range(32): k(exp(S[q] + i))
        k("s_nop 1")
        for i in range(4): k(smf(O[q], F[0] + 10 + 4*i, S[q] + 8*i))
    k(f"s_add_u32 s40, s40, {STEP}\ns_cmp_lt_u32 s40, {KV + 32*STEP}\ns_cbranch_scc1 L_att_slow2")
    k("s_mov_b32 s43, 1\ns_branch L_att_epi")
    finish(k)
    return k, 256, 256, 3 * CH

def gemm_loop(k, nsteps, ldA, mf, chunk_ticket, at_barrier):
    k.wait_vm(chunk_ticket(0)); k("s_waitcnt lgkmcnt(0)\ns_barrier"); at_barrier(0)
    tk = ldA(0)
    for st in range(nsteps):
        k.wait_lg(tk)
        if st + 1 < nsteps:
            if (st + 1) % 4 == 0:
                c = (st + 1) // 4
                k.wait_vm(chunk_ticket(c)); k("s_barrier"); at_barrier(c)
            tk = ldA(st + 1)
        mf(st)

def modvec20(k, vl, sj, colA, colB, MD, vo, ssrd):
    k(f"""v_min_u32 {v(vo)}, 19, {v(vl)}
    v_cmp_le_u32 vcc, 10, {v(vo)}
    v_mov_b32 {v(MD)}, {colA*4}
    v_mov_b32 {v(MD+1)}, {(colB-80)*4}
    v_cndmask_b32 {v(MD)}, {v(MD)}, {v(MD+1)}, vcc
    v_lshl_add_u32 {v(vo+1)}, {v(vo)}, 5, {v(MD)}
    s_mul_i32 s40, s{sj}, 320
    v_add_u32 {v(vo+1)}, s40, {v(vo+1)}""")
    return mod_vec(k, 0, MD, vo + 1, ssrd, MD + 8, False)

def k_oproj():
    k = Kern("k4opr_kernel", vgpr=208)
    L_MOD = 102400
    guard(k, 256)
    ld_ptr(k, 4, "x"); ld_ptr(k, 6, "wo"); ld_ptr(k, 12, "ws")
    stb, sj, sw = 14, 15, 16
    tile_map(k, 4, stb, sj)
    vl, vn, vG = 1, 2, 3
    lane_setup(k, vl, vn, vG, sw)
    X, ACC, AF, MD, VO = 16, 96, 120, 168, 8
    k(f"""s_lshl_b32 s17, s{stb}, 6
    s_lshl_b32 s18, s{sw}, 4
    s_add_u32 s17, s17, s18
    v_add_u32 v4, s17, v{vn}
    v_mul_u32_u24 v5, 1280, v4
    v_lshl_add_u32 v6, v{vG}, 3, v5
    v_lshl_add_u32 v5, v{vG}, 4, v5""")
    dma_voffs(k, vl, VO, 5, 10, 6554, 1280, 13, 14)
    k("s_waitcnt lgkmcnt(0)")
    k.srd(20, 4, 2048 * 1280); k.srd(24, 6, 640 * 1280); k.srd(28, 12, WSEND)
    tm = modvec20(k, vl, sj, 1280, 2560, MD, 200, 28)
    k(f"""s_mul_i32 s32, s{sj}, 160
    s_mul_i32 s34, s{sw}, {32*1280}
    s_add_u32 s33, s32, s34
    s_mul_i32 m0, s{sw}, 5120
    s_mov_b32 s35, {OB}""")
    tch = []
    for c in range(5):
        for j in range(5):
            k(f"s_nop 0\nbuffer_load_dwordx4 v{VO+j}, s[24:27], s33 offen lds")
            k(f"s_add_u32 m0, m0, {1024 if j < 4 else 20480 - 4096}")
        k(f"s_add_u32 s33, s33, {128*1280}")
        for st in range(4*c, 4*c+4): k(f"buffer_load_dwordx4 {v(X+4*st,4)}, v5, s[28:31], s35 offen offset:{64*st}")
        tch.append(k.vm_ticket())
    XR = 160 - 0
    XR = 184 + 0
    XR = 158
    for t in range(5): k(f"buffer_load_dwordx2 {v(XR+2*t,2)}, v6, s[20:23], s32 offen offset:{32*t}")
    txr = k.vm_ticket()
    k.wait_vm(tm)
    mod_fin(k, MD, MD + 8)
    k("v_cmp_le_u32 vcc, 10, v200")
    for i in range(8):
        k(f"v_add_f32 v{MD+8+i}, 1.0, v{MD+i}")
        bf16_round(k, MD + 8 + i, MD + 8 + i, MD + 16)
        k(f"v_cndmask_b32 v{MD+i}, v{MD+i}, v{MD+8+i}, vcc")
    k(f"""v_lshlrev_b32 v200, 5, v200
    v_add_u32 v200, {L_MOD}, v200
    ds_write_b128 v200, {v(MD,4)}
    ds_write_b128 v200, {v(MD+4,4)} offset:16""")
    AM = 13
    tr_addr(k, vl, vG, AM, 160, 201, 202)
    k(f"v_add_u32 v{AM+1}, 65536, v{AM}")
    AFS = 19
    def ldA(st):
        b = AF + (0 if st & 1 == 0 else 20) - 2
        for t in range(5): tr_read(k, b + 4*t, [AM, AM+1], st*5120 + t*32, 160)
        return k.lg_ticket()
    def mf(st):
        b = AF + (0 if st & 1 == 0 else 20) - 2
        for t in range(5):
            c = "0" if st == 0 else v(ACC+4*t, 4)
            k(f"v_mfma_f32_16x16x32_bf16 {v(ACC+4*t,4)}, {v(b+4*t,4)}, {v(X+4*st,4)}, {c}")
    gemm_loop(k, 20, ldA, mf, lambda c: tch[c], lambda c: None)
    GA, G2, T = X, X + 20, X + 40
    k(f"v_lshlrev_b32 v13, 4, v{vG}\nv_add_u32 v13, {L_MOD}, v13")
    for t in range(5): k(f"ds_read_b128 {v(GA+4*t,4)}, v13 offset:{64*t}\nds_read_b128 {v(G2+4*t,4)}, v13 offset:{320+64*t}")
    k(f"""s_add_u32 s33, s32, {X1}
    s_add_u32 s34, s32, {Y2}
    v_mov_b32 v14, 0
    v_mov_b32 v15, 0""")
    k.wait_vm(txr); k("s_waitcnt lgkmcnt(0)")
    for t in range(5):
        A_, xr, tt = ACC + 4*t, XR + 2*t, T + 8 * t
        k(f"""v_lshlrev_b32 v{tt}, 16, v{xr}
        v_and_b32 v{tt+1}, 0xffff0000, v{xr}
        v_lshlrev_b32 v{tt+2}, 16, v{xr+1}
        v_and_b32 v{tt+3}, 0xffff0000, v{xr+1}""")
        for i in range(4): k(f"v_fmac_f32 v{tt+i}, v{GA+4*t+i}, v{A_+i}")
        k(f"""v_cvt_pk_bf16_f32 v{xr}, v{tt}, v{tt+1}
        v_cvt_pk_bf16_f32 v{xr+1}, v{tt+2}, v{tt+3}
        buffer_store_dwordx2 {v(xr,2)}, v6, s[28:31], s33 offen offset:{32*t}
        v_lshlrev_b32 v{tt}, 16, v{xr}
        v_and_b32 v{tt+1}, 0xffff0000, v{xr}
        v_lshlrev_b32 v{tt+2}, 16, v{xr+1}
        v_and_b32 v{tt+3}, 0xffff0000, v{xr+1}""")
        for i in range(4): k(f"v_add_f32 v14, v14, v{tt+i}\nv_fmac_f32 v15, v{tt+i}, v{tt+i}\nv_mul_f32 v{tt+4+i}, v{tt+i}, v{G2+4*t+i}")
        k(f"""v_cvt_pk_bf16_f32 v{tt}, v{tt+4}, v{tt+5}
        v_cvt_pk_bf16_f32 v{tt+1}, v{tt+6}, v{tt+7}
        buffer_store_dwordx2 {v(tt,2)}, v6, s[28:31], s34 offen offset:{32*t}""")
    reduce_G(k, 14, 13); reduce_G(k, 15, 13)
    k(f"""s_lshl_b32 s33, s{sj}, 14
    s_add_u32 s33, s33, {STATS}
    v_lshlrev_b32 v13, 3, v4
    s_mov_b32 exec_lo, 0xffff
    s_mov_b32 exec_hi, 0
    buffer_store_dwordx2 v[14:15], v13, s[28:31], s33 offen""")
    finish(k)
    return k, 256, 256, L_MOD + 640

def k_ffn1():
    k = Kern("k5ff1_kernel", vgpr=200, agpr=160)
    L_PT, L_UB = 122880, 122880 + 2560
    guard(k, 256)
    ld_ptr(k, 6, "w1"); ld_ptr(k, 12, "ws")
    stb, sj, sw = 14, 15, 16
    tile_map(k, 2, stb, sj)
    vl, vn, vG = 1, 2, 3
    lane_setup(k, vl, vn, vG, sw)
    ACC, PS, AF, PB, MD, VO, AM, ST = 16, 64, 72, 120, 128, 8, 160, 176
    k(f"""s_lshl_b32 s17, s{stb}, 7
    s_lshl_b32 s18, s{sw}, 5
    s_add_u32 s17, s17, s18
    v_add_u32 v4, s17, v{vn}
    v_mul_u32_u24 v5, 1280, v4
    v_lshl_add_u32 v5, v{vG}, 4, v5
    v_add_u32 v6, {16*1280}, v5
    v_lshlrev_b32 v7, 3, v4
    v_lshl_add_u32 v7, v{vG}, 15, v7""")
    dma_voffs(k, vl, VO, 3, 6, 10923, 3072, 13, 14)
    k("v_lshlrev_b32 v11, 5, v0\ns_waitcnt lgkmcnt(0)")
    k.srd(24, 6, 640 * 3072); k.srd(28, 12, WSEND)
    tm = mod_vec(k, 1920, MD, 11, 28, MD + 8, False)
    k(f"s_mov_b32 s40, {STATS}\ns_mov_b32 s41, {STATS + 16384}")
    for tt in range(2):
        k(f"buffer_load_dwordx2 {v(ST+4*tt,2)}, v7, s[28:31], s40 offen offset:{128*tt}\nbuffer_load_dwordx2 {v(ST+4*tt+2,2)}, v7, s[28:31], s41 offen offset:{128*tt}")
    tst = k.vm_ticket()
    k(f"""s_mul_i32 s32, s{sj}, 192
    s_mul_i32 s34, s{sw}, {32*3072}
    s_add_u32 s33, s32, s34
    s_mul_i32 m0, s{sw}, 6144
    s_mov_b32 s35, {Y2}""")
    tch = {}
    def issue(c):
        k("s_add_u32 s34, s33, 96")
        for j in range(6):
            k(f"s_nop 0\nbuffer_load_dwordx4 v{VO+j%3}, s[24:27], s{33 + j//3} offen lds")
            k(f"s_add_u32 m0, m0, {1024 if j < 5 else 4*6144 - 5120}")
        k(f"s_add_u32 s33, s33, {128*3072}")
        for st in range(4*c, 4*c+4):
            for tt in range(2): k(f"buffer_load_dwordx4 {a(8*st+4*tt,4)}, v{5+tt}, s[28:31], s35 offen offset:{64*st}")
        tch[c] = k.vm_ticket()
    for c in range(3): issue(c)
    k.wait_vm(tm)
    mod_fin(k, MD, MD + 8)
    k("v_cmp_le_u32 vcc, 80, v0")
    for i in range(8):
        k(f"v_add_f32 v{MD+8+i}, 1.0, v{MD+i}\ns_nop 0\nv_cndmask_b32 v{MD+i}, v{MD+i}, v{MD+8+i}, vcc")
    for i in range(4): k(f"v_cvt_pk_bf16_f32 v{MD+i}, v{MD+2*i}, v{MD+2*i+1}")
    lab = k.label("nopt")
    k(f"""v_lshlrev_b32 v13, 4, v0
    v_add_u32 v14, {L_PT + 1280}, v13
    v_add_u32 v13, {L_PT - 1280}, v13
    v_cndmask_b32 v13, v14, v13, vcc
    v_cmp_gt_u32 vcc, 160, v0
    s_and_saveexec_b64 s[36:37], vcc
    s_cbranch_execz {lab}
    ds_write_b128 v13, {v(MD,4)}
    {lab}:
    s_mov_b64 exec, s[36:37]""")
    k.wait_vm(tst)
    RM = 184
    for tt in range(2):
        b = ST + 4*tt
        k(f"v_add_f32 v{b}, v{b}, v{b+2}\nv_add_f32 v{b+1}, v{b+1}, v{b+3}")
        reduce_G(k, b, b + 2); reduce_G(k, b + 1, b + 2)
        r = RM + 4*tt
        k(f"""v_mul_f32 v{b}, {f32(1/640)}, v{b}
        v_mul_f32 v{b+1}, {f32(1/640)}, v{b+1}
        v_fma_f32 v{b+1}, -v{b}, v{b}, v{b+1}
        v_max_f32 v{b+1}, 0, v{b+1}
        v_add_f32 v{b+1}, {f32(1e-5)}, v{b+1}
        v_rsq_f32 v{b+1}, v{b+1}
        s_nop 0
        v_mul_f32 v{r}, {f32(-LOG2E)}, v{b+1}
        v_mov_b32 v{r+1}, v{r}
        v_mul_f32 v{r+2}, -v{b}, v{r}
        v_mul_f32 v{r+3}, -v{b}, v{r}""")
    tr_addr(k, vl, vG, 13, 96, 14, 15)
    for t in range(6):
        k(f"""s_add_u32 s{50+t}, s{sw}, {t}
        s_cmp_ge_u32 s{50+t}, 6
        s_cselect_b32 s40, 6, 0
        s_sub_u32 s{50+t}, s{50+t}, s40
        s_cmp_ge_u32 s{50+t}, 3
        s_cselect_b32 s40, {3072 - 96}, 0
        s_lshl_b32 s41, s{50+t}, 5
        s_add_u32 s40, s40, s41
        v_add_u32 v{AM+2*t}, s40, v13
        v_add_u32 v{AM+2*t+1}, 65536, v{AM+2*t}""")
    k(f"""v_min_u32 v13, 1, v{vn}
    v_mul_u32_u24 v13, 1280, v13
    v_lshl_add_u32 v12, v{vG}, 4, v13
    v_add_u32 v12, {L_PT}, v12""")
    def ldA(st):
        b = AF + 24 * (st & 1)
        for t in range(6): tr_read(k, b + 4*t, [AM+2*t, AM+2*t+1], st*6144, 96)
        k(f"ds_read_b128 {v(PB+4*(st&1),4)}, v12 offset:{64*st}")
        return k.lg_ticket()
    def mf(st):
        b = AF + 24 * (st & 1)
        for t in range(6):
            for tt in range(2):
                d = ACC + 8*t + 4*tt
                k(f"v_mfma_f32_16x16x32_bf16 {v(d,4)}, {v(b+4*t,4)}, {a(8*st+4*tt,4)}, {'0' if st == 0 else v(d,4)}")
        for i, t in enumerate((0, 4)):
            d = PS + 4*i
            k(f"v_mfma_f32_16x16x32_bf16 {v(d,4)}, {v(b+4*t,4)}, {v(PB+4*(st&1),4)}, {'0' if st == 0 else v(d,4)}")
    gemm_loop(k, 20, ldA, mf, lambda c: tch[c], lambda c: issue(c + 3) if c + 3 < 5 else None)
    k(f"""v_mul_u32_u24 v13, 384, v{vn}
    v_lshl_add_u32 v13, v{vG}, 4, v13
    v_add_u32 v13, {L_UB}, v13
    s_lshl_b32 s40, s50, 6
    s_lshl_b32 s41, s54, 6
    v_add_u32 v14, s40, v13
    v_add_u32 v15, s41, v13
    v_cmp_gt_u32 vcc, 2, v{vn}
    s_and_saveexec_b64 s[36:37], vcc
    s_nop 2
    ds_write_b128 v14, {v(PS,4)}
    ds_write_b128 v15, {v(PS+4,4)}
    s_mov_b64 exec, s[36:37]
    v_lshlrev_b32 v13, 4, v{vG}
    v_add_u32 v13, {L_UB}, v13
    s_waitcnt lgkmcnt(0)
    s_barrier""")
    U = AF
    for t in range(6):
        k(f"""s_lshl_b32 s40, s{50+t}, 6
        v_add_u32 v14, s40, v13
        ds_read_b128 {v(U+8*t,4)}, v14
        ds_read_b128 {v(U+8*t+4,4)}, v14 offset:384""")
    k(f"""v_mul_u32_u24 v5, 3072, v4
    v_lshl_add_u32 v5, v{vG}, 3, v5
    v_add_u32 v6, {16*3072}, v5
    s_add_u32 s32, s32, {HB}
    s_mov_b32 s42, {f32(-LOG2E)}
    v_mov_b32 v8, 1.0
    v_mov_b32 v9, 1.0
    s_waitcnt lgkmcnt(0)""")
    T = MD
    for t in range(6):
        u, b = U + 8*t, U + 8*t + 4
        for i in range(4): k(f"v_mul_f32 v{b+i}, s42, v{b+i}")
        k(f"s_lshl_b32 s40, s{50+t}, 5\ns_add_u32 s40, s40, s32")
        for tt in range(2):
            d, r, e = ACC + 8*t + 4*tt, RM + 4*tt, T + 8*tt
            for h in (0, 2): k(f"v_pk_fma_f32 {v(e+h,2)}, {v(u+h,2)}, {v(r+2,2)}, {v(b+h,2)}")
            for h in (0, 2): k(f"v_pk_fma_f32 {v(d+h,2)}, {v(d+h,2)}, {v(r,2)}, {v(e+h,2)}")
            for i in range(4): k(f"v_exp_f32 v{e+i}, v{d+i}")
            k("s_nop 0")
            for h in (0, 2): k(f"v_pk_add_f32 {v(e+h,2)}, {v(e+h,2)}, v[8:9]")
            for i in range(4): k(f"v_rcp_f32 v{e+i}, v{e+i}")
            k("s_nop 0")
            for h in (0, 2): k(f"v_pk_mul_f32 {v(d+h,2)}, {v(d+h,2)}, {v(e+h,2)}")
            k(f"""v_cvt_pk_bf16_f32 v{d}, v{d}, v{d+1}
            v_cvt_pk_bf16_f32 v{d+1}, v{d+2}, v{d+3}
            buffer_store_dwordx2 {v(d,2)}, v{5+tt}, s[28:31], s40 offen""")
    finish(k)
    return k, 256, 256, L_UB + 768

def k_ffn2():
    k = Kern("k6ff2_kernel", vgpr=128, agpr=192)
    RING = 7
    L_MOD = RING * 20480
    guard(k, 256)
    ld_ptr(k, 4, "out"); ld_ptr(k, 6, "w2"); ld_ptr(k, 12, "ws")
    stb, sj, sw = 14, 15, 16
    tile_map(k, 4, stb, sj)
    vl, vn, vG = 1, 2, 3
    lane_setup(k, vl, vn, vG, sw)
    ACC, AF, MD, VO, XR, AM = 16, 36, 76, 8, 112, 122
    k(f"""s_lshl_b32 s17, s{stb}, 6
    s_lshl_b32 s18, s{sw}, 4
    s_add_u32 s17, s17, s18
    v_add_u32 v4, s17, v{vn}
    v_mul_u32_u24 v5, 3072, v4
    v_lshl_add_u32 v5, v{vG}, 4, v5
    v_mul_u32_u24 v6, 1280, v4
    v_lshl_add_u32 v6, v{vG}, 3, v6""")
    dma_voffs(k, vl, VO, 5, 10, 6554, 1280, 13, 14)
    k("s_waitcnt lgkmcnt(0)")
    k.srd(20, 4, 2048 * 1280); k.srd(24, 6, 1536 * 1280); k.srd(28, 12, WSEND)
    tm = modvec20(k, vl, sj, 3200, 3200, MD, 108, 28)
    k(f"""s_mul_i32 s32, s{sj}, 160
    s_mul_i32 s34, s{sw}, {32*1280}
    s_add_u32 s33, s32, s34
    s_mul_i32 s36, s{sw}, 5120
    s_mov_b32 s35, {HB}""")
    tch = {}
    def issue(c):
        for j in range(5):
            k(f"s_add_u32 m0, s36, {(c % RING)*20480 + 1024*j}\ns_nop 0\nbuffer_load_dwordx4 v{VO+j}, s[24:27], s33 offen lds")
        k(f"s_add_u32 s33, s33, {128*1280}")
        for st in range(4*c, 4*c+4): k(f"buffer_load_dwordx4 {a(4*st,4)}, v5, s[28:31], s35 offen offset:{64*st}")
        tch[c] = k.vm_ticket()
    for c in range(6): issue(c)
    k.wait_vm(tm)
    mod_fin(k, MD, MD + 8)
    for i in range(8): k(f"v_mul_f32 v{MD+i}, {f32(-math.log(2.0))}, v{MD+i}")
    k(f"""v_lshlrev_b32 v108, 5, v108
    v_add_u32 v108, {L_MOD}, v108
    ds_write_b128 v108, {v(MD,4)}
    ds_write_b128 v108, {v(MD+4,4)} offset:16""")
    tr_addr(k, vl, vG, AM, 160, 13, 14)
    k(f"v_add_u32 v{AM+1}, 65536, v{AM}\nv_add_u32 v{AM+2}, 131072, v{AM}")
    def ldA(st):
        b = AF + 20 * (st & 1)
        for t in range(5): tr_read(k, b + 4*t, [AM, AM+1, AM+2], ((st//4) % RING)*20480 + (st % 4)*5120 + t*32, 160)
        return k.lg_ticket()
    def mf(st):
        b = AF + 20 * (st & 1)
        for t in range(5):
            k(f"v_mfma_f32_16x16x32_bf16 {v(ACC+4*t,4)}, {v(b+4*t,4)}, {a(4*st,4)}, {'0' if st == 0 else v(ACC+4*t,4)}")
    txr = [None]
    def atb(c):
        if c >= 1 and c + 5 < 12: issue(c + 5)
        if c == 8:
            k(f"s_add_u32 s34, s32, {X1}")
            for t in range(5): k(f"buffer_load_dwordx2 {v(XR+2*t,2)}, v6, s[28:31], s34 offen offset:{32*t}")
            txr[0] = k.vm_ticket()
    gemm_loop(k, 48, ldA, mf, lambda c: tch[c], atb)
    GB, T = MD, AF
    k(f"v_lshlrev_b32 v13, 4, v{vG}\nv_add_u32 v13, {L_MOD}, v13")
    for t in range(5): k(f"ds_read_b128 {v(GB+4*t,4)}, v13 offset:{64*t}")
    k.wait_vm(txr[0]); k("s_waitcnt lgkmcnt(0)\ns_nop 1")
    for t in range(5):
        A_, xr, tt = ACC + 4*t, XR + 2*t, T + 4*t
        k(f"""v_lshlrev_b32 v{tt}, 16, v{xr}
        v_and_b32 v{tt+1}, 0xffff0000, v{xr}
        v_lshlrev_b32 v{tt+2}, 16, v{xr+1}
        v_and_b32 v{tt+3}, 0xffff0000, v{xr+1}""")
        for i in range(4): k(f"v_fmac_f32 v{tt+i}, v{GB+4*t+i}, v{A_+i}")
        k(f"""v_cvt_pk_bf16_f32 v{xr}, v{tt}, v{tt+1}
        v_cvt_pk_bf16_f32 v{xr+1}, v{tt+2}, v{tt+3}
        buffer_store_dwordx2 {v(xr,2)}, v6, s[20:23], s32 offen offset:{32*t}""")
    finish(k)
    return k, 256, 256, L_MOD + 640

def build(kernels, path):
    head = open("cdna_kernels/" + NAME + ".s.ref").read().split("; Override launch geometry")[0]
    out = head
    for (k, g, b, lds) in kernels: out += f"; @launch kernel={k.name} grid=({g},1,1) block=({b},1,1) lds={lds}\n"
    out += '.amdgcn_target "amdgcn-amd-amdhsa--gfx950"\n.text\n'
    seen, errs = [], []
    for (k, g, b, lds) in kernels:
        if k.name in seen: continue
        seen.append(k.name); out += k.text(); errs += check_hazards(k)
    out += '.section .rodata,"a"\n'
    seen = []
    for (k, g, b, lds) in kernels:
        if k.name in seen: continue
        seen.append(k.name); out += k.desc()
    open(path, "w").write(out)
    for e in errs: print("HAZARD", e)
    return errs

if __name__ == "__main__":
    ks = [k_mod(), k_qkv(), k_attn(), k_oproj(), k_ffn1(), k_ffn2()]
    build(ks, sys.argv[1] if len(sys.argv) > 1 else "cdna_kernels/" + NAME + ".s")
```

```python
import sys
from gen1 import *
def k_nop(i):
    k = Kern(f"nop{i}_kernel", vgpr=8)
    k("s_nop 0")
    finish(k)
    return k, 256, 64, 0
n = int(sys.argv[1])
ks = [k_mod(), k_qkv(), k_attn(), k_oproj(), k_ffn1(), k_ffn2()] + [k_nop(0)] * n
build(ks, sys.argv[2])
```

```python
from asmlib import *
import math
G = None
def rest(k, g):
    global G
    G = g
    globals().update({n: getattr(g, n) for n in dir(g) if not n.startswith("__") and n not in ("rest",)})
    attention(k)
    if OPT["stop"] == "att": return
    tail(k)

S = [16, 48]; Q = [80, 86]; W1V = 96
IDX, VOP, VQM, VQT = 5, 6, 7, 8
AO = [208, 224]; AZ = 240
BAD = 79
def kvreg(ks): return 26 * ks
exp = lambda r: f"v_exp_f32 v{r}, v{r}"
def smf(o, vv, b): return f"v_smfmac_f32_32x32x32_bf16 {o}, {vv}, {v(b,8)}, v{IDX}"
def m16(sd, kk, q): return f"v_mfma_f32_32x32x16_bf16 {v(sd,16)}, {kk}, {v(q,4)}, {v(sd,16)}"
def m2b(sd, kk, q): return f"v_mfma_f32_32x32x4_2b_bf16 {v(sd,32)}, {kk}, {v(q,2)}, 0"

def udiv(k, dq, dr, src, d):
    m = (1 << 20) // d + 1
    assert all((x * m) >> 20 == x // d for x in range(2048))
    k(f"s_mul_i32 s{dq}, s{src}, {m}\ns_lshr_b32 s{dq}, s{dq}, 20\ns_mul_i32 s{dr}, s{dq}, {d}\ns_sub_u32 s{dr}, s{src}, s{dr}")

def prep_issue(k):
    k(f"""s_lshl_b32 s52, s2, 2
    s_add_u32 s52, s52, s{W}
    s_cmp_ge_u32 s52, 960
    s_cselect_b32 s53, 960, 0
    s_sub_u32 s53, s52, s53
    s_mul_i32 s66, s{W}, 6144
    v_lshrrev_b32 v9, 2, v{VL}
    v_and_b32 v10, 3, v{VL}
    v_lshlrev_b32 v10, 4, v10""")
    k.srd(RA, sW1, 640 * 3072)
    udiv(k, 54, 55, 53, 48)
    k(f"""v_mul_u32_u24 v11, 3072, v9
    v_add_u32 v11, v11, v10
    s_mul_i32 s56, s54, {32*3072}
    s_lshl_b32 s57, s55, 6
    s_add_u32 s56, s56, s57
    s_add_u32 m0, s66, {L_WO}
    s_add_u32 s57, s56, {16*3072}
    buffer_load_dwordx4 v11, {s(RA,4)}, s56 offen lds
    s_add_u32 m0, m0, 1024
    s_lshl_b32 s55, s55, 1
    buffer_load_dwordx4 v11, {s(RA,4)}, s57 offen lds""")
    for h in range(2):
        if h: k("s_add_u32 s55, s55, 1")
        udiv(k, 56, 57, 55, 3)
        k(f"""s_mul_i32 s56, s56, 60
        s_mul_i32 s{60+h}, s54, 3
        s_add_u32 s56, s56, s57
        s_add_u32 s56, s56, s{60+h}
        s_lshl_b32 s56, s56, 10
        s_add_u32 s{60+h}, s56, {W1T}""")
    def dst5(reg, per_j, base):
        for h in range(2):
            if h: k("s_add_u32 s55, s55, 1")
            udiv(k, 56, 57, 55, 5)
            k(f"""s_mul_i32 s56, s56, {per_j}
            s_mul_i32 s{reg+h}, s54, 5
            s_add_u32 s56, s56, s57
            s_add_u32 s56, s56, s{reg+h}
            s_lshl_b32 s56, s56, 10
            s_add_u32 s{reg+h}, s56, {base}""")
    k.srd(RA, sW2, 1536 * 1280)
    udiv(k, 54, 55, 53, 20)
    k(f"""v_mul_u32_u24 v11, 1280, v9
    v_add_u32 v11, v11, v10
    s_mul_i32 s56, s54, {32*1280}
    s_lshl_b32 s57, s55, 6
    s_add_u32 s56, s56, s57
    s_add_u32 m0, m0, 1024
    s_add_u32 s57, s56, {16*1280}
    buffer_load_dwordx4 v11, {s(RA,4)}, s56 offen lds
    s_add_u32 m0, m0, 1024
    s_lshl_b32 s55, s55, 1
    buffer_load_dwordx4 v11, {s(RA,4)}, s57 offen lds""")
    dst5(62, 240, W2T)
    k.srd(RA, sWO, 640 * 1280)
    udiv(k, 54, 53, 52, 400)
    udiv(k, 54, 55, 53, 20)
    k("s_lshl_b32 s56, s54, 2\ns_lshl_b32 s57, s55, 6")
    for r in range(2):
        k(f"""v_lshrrev_b32 v11, 5, v{VL}
        v_add_u32 v11, {2*r}, v11
        v_add_u32 v11, s56, v11
        v_mul_u32_u24 v12, 6554, v11
        v_lshrrev_b32 v12, 16, v12
        v_mul_u32_u24 v13, 10, v12
        v_sub_u32 v11, v11, v13
        v_mul_u32_u24 v12, 80, v12
        v_and_b32 v13, 3, v9
        v_add_u32 v12, v12, v13
        v_bfe_u32 v13, v{VL}, 4, 1
        v_lshrrev_b32 v92, 1, v11
        v_mul_u32_u24 v92, 20, v92
        v_and_b32 v93, 1, v11
        v_lshl_add_u32 v92, v93, 2, v92
        v_lshl_add_u32 v92, v13, 3, v92
        v_mul_u32_u24 v93, 40, v93
        v_mul_u32_u24 v13, 20, v13
        v_add3_u32 v93, v93, v13, 16
        v_cmp_le_u32 vcc, 8, v11
        s_add_u32 m0, m0, 1024
        s_nop 0
        v_cndmask_b32 v92, v92, v93, vcc
        v_add_u32 v12, v12, v92
        v_mul_u32_u24 v12, 1280, v12
        v_add_u32 v12, v12, v10
        buffer_load_dwordx4 v12, {s(RA,4)}, s57 offen lds""")
    k("s_lshl_b32 s55, s55, 1")
    dst5(64, 100, WOT)
    return k.vm_ticket()

def norm_store(k, R, half, t):
    l, z = t, t + 1
    skip = k.label("unsafe")
    k(f"""v_mov_b32 v{z}, v{R+8}
    v_mov_b32 v{l}, v{R+8}
    v_mov_b32 v{t+2}, 0
    s_mov_b32 s52, {f32(2.0**-20)}
    v_permlane32_swap_b32 v{z}, v{l}""")
    if half is not None:
        for i in range(12): k(f"v_fmac_f32 v{t+2}, 0, v{R+i}")
        k(f"""s_mov_b32 s53, {f32(2.0**60)}
        v_cmp_le_f32 vcc, s52, v{l}
        v_cmp_ge_f32 s[54:55], s53, v{l}
        s_and_b64 vcc, vcc, s[54:55]
        v_cmp_eq_f32 s[54:55], 0, v{t+2}
        s_and_b64 vcc, vcc, s[54:55]
        s_cmp_eq_u64 vcc, -1
        s_cselect_b32 s52, 0, {1 << half}
        s_or_b32 s{BAD}, s{BAD}, s52
        s_cmp_lg_u32 s52, 0
        s_cbranch_scc1 {skip}""")
        k(f"s_mov_b32 s52, {half * 2 * 20480}")
    else:
        k(f"s_mul_i32 s52, s78, {2*20480}")
    k(f"""v_rcp_f32 v{l}, v{l}
    s_add_u32 s53, s52, s69
    s_add_u32 s52, s52, s68""")
    for i in range(12): k(f"v_mul_f32 v{R+i}, v{l}, v{R+i}")
    for i in range(6): k(f"v_cvt_pk_bf16_f32 v{R+i}, v{R+2*i}, v{R+2*i+1}")
    k(f"""buffer_store_dwordx4 {v(R,4)}, v12, {s(RWS,4)}, s52 offen sc1
    s_mov_b32 exec_hi, 0
    buffer_store_dwordx2 {v(R+4,2)}, v12, {s(RWS,4)}, s53 offen sc1
    s_mov_b32 exec_hi, -1
    {skip}:""")
def s_or_scc_note(): pass

def reduce_reads(k, T):
    for ws in range(4):
        for i in range(3): k(f"ds_read_b128 {v(T + 12*ws + 4*i, 4)}, v13 offset:{ws*12288 + i*1024}")
    return k.lg_ticket()
def reduce_sum(k, T):
    for i in range(12): k(f"v_add_f32 v{T+i}, v{T+i}, v{T+12+i}\nv_add_f32 v{T+24+i}, v{T+24+i}, v{T+36+i}")
    for i in range(12): k(f"v_add_f32 v{T+i}, v{T+i}, v{T+24+i}")

def attention(k):
    k(f"""v_mov_b32 v{IDX}, 0xdddd
    s_mov_b32 s{BAD}, 0
    v_and_b32 v9, 31, v{VL}
    v_lshrrev_b32 v10, 5, v{VL}
    v_cmp_eq_u32 vcc, 20, v9
    v_mov_b32 v11, 0x3f803f80
    v_lshlrev_b32 v92, 3, v{VL}
    v_cndmask_b32 v11, 0, v11, vcc
    v_mul_u32_u24 v93, 320, v10
    v_lshl_add_u32 v93, v9, 4, v93
    s_mul_i32 s52, s{W}, 12288
    s_add_u32 s52, s52, {L_OP}
    v_add_u32 v{VOP}, s52, v{VL16}
    v_add_u32 v{VQM}, {L_QL}, v{VL16}
    v_lshlrev_b32 v{VQT}, 3, v9
    v_add_u32 v{VQT}, {L_QL + 1024}, v{VQT}""")
    for ks in range(8):
        for i in range(16): k(f"v_accvgpr_write_b32 a{kvreg(ks)+10+i}, v11")
    for i in range(34): k(f"v_accvgpr_write_b32 a{AO[0]+i}, 0")
    def ldq(x, pair):
        o = ((pair >> 1) * 4 + 2 * (pair & 1) + x) * 1280
        return [f"ds_read_b128 {v(Q[x],4)}, v{VQM} offset:{o}", f"ds_read_b64 {v(Q[x]+4,2)}, v{VQT} offset:{o}"]
    for x in range(2):
        for l in ldq(x, 0): k(l)
    k(f"s_lshl_b32 s59, s{W}, 10\ns_add_u32 s59, s59, {FKV}")
    poll(k, "pkv", [(16, 4, VL16, "s59", 0, [0, 2])], 1)
    stamp(k, "kv flags")
    k(f"s_mul_i32 s52, s{W}, {8*KSTEP}\ns_add_u32 s52, s52, {KV}")
    tkv = []
    for ks in range(8):
        b = kvreg(ks)
        k(f"""s_add_u32 s53, s52, 2560
        buffer_load_dwordx2 {a(b+8,2)}, v92, {s(RWS,4)}, s52 offen offset:2048 sc1
        buffer_load_dwordx4 {a(b,4)}, v{VL16}, {s(RWS,4)}, s52 offen sc1
        buffer_load_dwordx4 {a(b+4,4)}, v{VL16}, {s(RWS,4)}, s52 offen offset:1024 sc1""")
        tk_ = k.vm_ticket()
        set_exec(k, 0xfffff, 0xfffff)
        for c in range(4): k(f"buffer_load_dwordx4 {a(b+10+4*c,4)}, v93, {s(RWS,4)}, s53 offen offset:{640*c} sc1")
        k(f"s_mov_b64 exec, -1\ns_add_u32 s52, s52, {KSTEP}")
        tkv.append((tk_, k.vm_ticket()))
    tprep = prep_issue(k)
    k(f"""s_mul_i32 s52, s{W}, 3072
    s_add_u32 s52, s52, {L_OP}
    v_add_u32 v13, s52, v{VL16}
    v_bfe_u32 v9, v{VL}, 4, 1
    v_mul_u32_u24 v12, 20480, v9
    v_lshl_add_u32 v12, v{VN}, 4, v12
    v_lshrrev_b32 v9, 5, v{VL}
    v_lshl_add_u32 v12, v9, 8, v12
    s_mul_i32 s68, s{TB}, {4*20480}
    s_mul_i32 s52, s{J}, 2560
    s_add_u32 s68, s68, s52
    s_add_u32 s68, s68, {OB}
    s_lshr_b32 s52, s{W}, 1
    s_lshl_b32 s52, s52, 8
    s_and_b32 s53, s{W}, 1
    s_lshl_b32 s53, s53, 3
    s_add_u32 s52, s52, s53
    s_add_u32 s69, s68, s52
    s_add_u32 s69, s69, 2048
    s_lshl_b32 s52, s{W}, 9
    s_add_u32 s68, s68, s52""")
    k(f"""v_lshlrev_b32 v9, 3, v{VG}
    v_bfe_u32 v10, v{VL}, 2, 2
    v_add_u32 v9, v9, v10
    v_lshlrev_b32 v9, 6, v9
    v_and_b32 v10, 3, v{VL}
    v_lshl_add_u32 v9, v10, 3, v9
    v_add_u32 v9, s66, v9""")
    k(f"""s_mul_i32 s70, s{J}, 102400
    s_mul_i32 s71, s{W}, 25600
    s_add_u32 s70, s70, s71
    s_add_u32 s70, s70, {WOT}
    s_lshl_b32 s72, s{J}, 2
    s_add_u32 s72, s72, s{W}
    s_mul_i32 s72, s72, 61440
    s_add_u32 s73, s72, {W2T}
    s_add_u32 s72, s72, {W1T}""")
    k.wait_vm(tkv[0][0]); k("s_waitcnt lgkmcnt(0)")
    stamp(k, "k0 landed")
    k(m2b(S[0], a(8,2), Q[0] + 4)); k("s_nop 15\ns_nop 1")
    k(m16(S[0], a(0,4), Q[0])); k(m16(S[0] + 16, a(4,4), Q[0])); k("s_nop 10")
    P = dict(s3=2, t=5, s0=13, s1=18, m0=22, s2=26, m1=30)
    st = {}
    TP = 208
    for ph in range(64):
        pair, ks, x = ph >> 4, (ph >> 1) & 7, ph & 1
        X, Y = S[x], S[1 - x]
        kn = kvreg(ks if x == 0 else (ks + 1) & 7)
        vp = kvreg((ks - 1) & 7 if x == 0 else ks)
        vv = kvreg(ks)
        ins = {}
        def at(p, f): ins.setdefault(p, []).append(f)
        def em(p, *ls):
            for l in ls: at(p, (lambda l=l: k(l)))
        if pair == 0:
            if x == 1 and ks < 7: at(P["t"], lambda ks=ks: k.wait_vm(tkv[ks + 1][0]))
            if x == 0: at(P["s0"], lambda ks=ks: k.wait_vm(tkv[ks][1]))
        if "q" in st: t_ = st.pop("q"); at(0, lambda t_=t_: k.wait_lg(t_[0]))
        if ph > 0: em(P["s3"], smf(a(AO[1-x],16), a(vp+22,4), Y + 24))
        if ph < 63: em(P["t"], m2b(Y, a(kn+8,2), Q[1-x] + 4))
        em(P["s0"], smf(a(AO[x],16), a(vv+10,4), X)); em(P["s1"], smf(a(AO[x],16), a(vv+14,4), X + 8))
        if ph < 63: em(P["m0"], m16(Y, a(kn,4), Q[1-x]))
        em(P["s2"], smf(a(AO[x],16), a(vv+18,4), X + 16))
        if ph < 63: em(P["m1"], m16(Y + 16, a(kn+4,4), Q[1-x]))
        if ks == 7 and pair < 3:
            tq = [None]
            if x == 0:
                em(P["t"], *ldq(0, pair + 1)); at(P["t"], lambda tq=tq: tq.__setitem__(0, k.lg_ticket()))
            else:
                em(P["t"], *ldq(1, pair + 1)); at(P["t"], lambda tq=tq: tq.__setitem__(0, k.lg_ticket()))
            st["qn"] = tq
        fl = None
        if ks == 7 and x == 1: fl = (0, pair)
        if ks == 0 and x == 0 and pair > 0: fl = (1, pair - 1)
        if fl:
            o, pr = fl
            for i in range(3): em(16, f"ds_write_b128 v{VOP}, {a(AO[o]+4*i,4)} offset:{(2*(pr&1)+o)*3072 + i*1024}")
            if ph < 63: em(28, f"v_mfma_f32_32x32x8_bf16 {a(AO[o],16)}, {a(AZ,2)}, {a(AZ,2)}, 0")
        if ph == 10:
            at(P["t"], lambda: k.wait_vm(tprep))
            for u in range(3):
                for h in range(2):
                    f = TP + 8*u + 4*h
                    em(P["t"], f"ds_read_b64_tr_b16 {v(f,2)}, v9 offset:{2048*u + 32*h}", f"ds_read_b64_tr_b16 {v(f+2,2)}, v9 offset:{2048*u + 32*h + 256}")
        if ph == 11:
            em(P["t"], "s_waitcnt lgkmcnt(0)")
            for i in range(6): em(P["t"], f"buffer_store_dwordx4 {v(TP+4*i,4)}, v{VL16}, {s(RWS,4)}, s{60+i} offen sc1")
        if 24 <= ph < 49:
            em(P["t"], f"s_add_u32 m0, s71, {L_WO + 1024*(ph-24)}", f"s_add_u32 s52, s70, {1024*(ph-24)}", f"buffer_load_dwordx4 v{VL16}, {s(RWS,4)}, s52 offen sc1 lds")
        if ph >= 24:
            f = ph - 24
            if f % 4 == 0 and f: em(P["t"], "s_add_u32 s72, s72, 4096")
            em(P["t"], f"buffer_load_dwordx4 {v(W1V+4*f,4)}, v{VL16}, {s(RWS,4)}, s72 offen offset:{1024*(f%4)} sc1")
        if ph == 33: at(P["t"], lambda: st.__setitem__("red", reduce_reads(k, TP)))
        if ph == 34:
            def red():
                k.wait_lg(st["red"]); reduce_sum(k, TP); norm_store(k, TP, 0, TP + 12)
            at(P["t"], red)
        for i in range(32):
            for f in ins.get(i, []): f()
            k(exp(X + i))
        if "qn" in st: st["q"] = st.pop("qn")
        if ph == 16:
            k(f"""s_waitcnt vmcnt(0)
            s_barrier
            s_cmp_lg_u32 s{W}, 0
            s_cbranch_scc1 L_noprepflag
            s_lshl_b32 s52, s2, 3
            s_add_u32 s52, s52, {FPREP}""")
            flag_store(k, 52, TP); k("L_noprepflag:")
        if ph == 23:
            k(f"s_mov_b32 s59, {FPREP}")
            poll(k, "pprep", [(TP, 4, VL16, "s59", 0, [0, 2]), (TP + 4, 4, VL16, "s59", 1024, [0, 2])], 2)
            k(f"s_or_b32 s52, s2, s{W}\ns_cbranch_scc1 L_noepoch\ns_mov_b32 s52, {EPOCH}")
            flag_store(k, 52, TP); k("L_noepoch:")
        if ph == 32: k("s_waitcnt lgkmcnt(0)\ns_barrier")
        if ph == 40: k("s_barrier")
        if ph in (15, 31, 47): stamp(k, f"sweep{ph>>4}")
    k("s_nop 1"); k(smf(a(AO[1],16), a(kvreg(7)+22,4), S[1] + 24)); k("s_nop 11")
    for i in range(3): k(f"ds_write_b128 v{VOP}, {a(AO[1]+4*i,4)} offset:{3*3072 + i*1024}")
    k("s_waitcnt lgkmcnt(0)\ns_barrier")
    stamp(k, "att loop")
    t_ = reduce_reads(k, 16); k.wait_lg(t_); reduce_sum(k, 16); norm_store(k, 16, 1, 28)
    k(f"L_slowchk:\ns_cmp_eq_u32 s{BAD}, 0\ns_cbranch_scc0 L_slow\nL_slowret:")

def slow_path(k):
    F, O, M = 48, 76, 94
    k(f"""L_slow:
    s_ff1_i32_b32 s78, s{BAD}
    s_bitset0_b32 s{BAD}, s78
    s_lshl_b32 s52, s78, 2
    s_add_u32 s52, s52, s{W}
    s_mul_i32 s52, s52, 1280
    v_add_u32 v10, s52, v{VQM}
    v_add_u32 v11, s52, v{VQT}
    ds_read_b128 {v(Q[0],4)}, v10
    ds_read_b64 {v(Q[0]+4,2)}, v11
    v_and_b32 v9, 31, v{VL}
    v_lshrrev_b32 v10, 5, v{VL}
    v_cmp_eq_u32 vcc, 20, v9
    v_mov_b32 v11, 0x3f803f80
    v_lshlrev_b32 v92, 3, v{VL}
    v_cndmask_b32 v11, 0, v11, vcc
    v_mul_u32_u24 v93, 320, v10
    v_lshl_add_u32 v93, v9, 4, v93
    v_mov_b32 v{M}, 0xff800000""")
    for i in range(16): k(f"v_mov_b32 v{F+10+i}, v11\nv_accvgpr_write_b32 a{AO[0]+i}, 0")
    def gl_k():
        k(f"""buffer_load_dwordx4 {v(F,4)}, v{VL16}, {s(RWS,4)}, s52 offen sc1
        buffer_load_dwordx4 {v(F+4,4)}, v{VL16}, {s(RWS,4)}, s52 offen offset:1024 sc1
        buffer_load_dwordx2 {v(F+8,2)}, v92, {s(RWS,4)}, s52 offen offset:2048 sc1""")
    def qk():
        k("s_waitcnt vmcnt(0) lgkmcnt(0)")
        k(m2b(S[0], v(F+8,2), Q[0] + 4)); k("s_nop 15\ns_nop 1")
        k(m16(S[0], v(F,4), Q[0])); k(m16(S[0] + 16, v(F+4,4), Q[0])); k("s_nop 11")
    k(f"s_mov_b32 s52, {KV}\nL_slow1:")
    gl_k(); qk()
    for i in range(16): k(f"v_max3_f32 v{M}, v{S[0]+2*i}, v{S[0]+2*i+1}, v{M}")
    k(f"s_add_u32 s52, s52, {KSTEP}\ns_cmp_lt_u32 s52, {KV + 32*KSTEP}\ns_cbranch_scc1 L_slow1")
    k(f"""v_mov_b32 v10, v{M}
    s_nop 1
    v_permlane32_swap_b32 v{M}, v10
    s_nop 0
    v_max_f32 v{M}, v{M}, v10
    s_mov_b32 s52, {KV}
    L_slow2:
    s_add_u32 s53, s52, 2560""")
    gl_k()
    set_exec(k, 0xfffff, 0xfffff)
    for c in range(4): k(f"buffer_load_dwordx4 {v(F+10+4*c,4)}, v93, {s(RWS,4)}, s53 offen offset:{640*c} sc1")
    k("s_mov_b64 exec, -1")
    qk()
    for i in range(32): k(f"v_sub_f32 v{S[0]+i}, v{S[0]+i}, v{M}")
    for i in range(32): k(exp(S[0] + i))
    k("s_nop 1")
    for c in range(4): k(smf(a(AO[0],16), v(F+10+4*c,4), S[0] + 8*c))
    k(f"s_add_u32 s52, s52, {KSTEP}\ns_cmp_lt_u32 s52, {KV + 32*KSTEP}\ns_cbranch_scc1 L_slow2\ns_nop 11")
    for i in range(12): k(f"v_accvgpr_read_b32 v{16+i}, a{AO[0]+i}")
    norm_store(k, 16, None, 28)
    k("s_waitcnt vmcnt(0)\ns_branch L_slowchk")

def w1reg(f): return v(W1V + 4*f, 4) if f < 40 else a(4*(f-40), 4)
AX1 = 102
def unpack4(k, d, p):
    k(f"""v_lshlrev_b32 v{d}, 16, v{p}
    v_and_b32 v{d+1}, 0xffff0000, v{p}
    v_lshlrev_b32 v{d+2}, 16, v{p+1}
    v_and_b32 v{d+3}, 0xffff0000, v{p+1}""")
def cluster_flag_off(k, base, dst):
    k(f"""s_lshl_b32 s{dst}, s{TB}, 5
    s_lshl_b32 s52, s{J}, 2
    s_add_u32 s{dst}, s{dst}, s52
    s_add_u32 s{dst}, s{dst}, s{W}
    s_lshl_b32 s{dst}, s{dst}, 3
    s_add_u32 s{dst}, s{dst}, {base}""")
def pair_store(k, r0, r1, tmp, voff, srd, soff, imm, mod, single=False):
    k(f"""v_mov_b32 v{tmp}, v{r0}
    v_mov_b32 v{tmp+1}, v{r0+1}
    v_mov_b32 v{tmp+2}, v{r1}
    v_mov_b32 v{tmp+3}, v{r1+1}
    s_nop 0
    v_permlane16_swap_b32 v{tmp}, v{tmp+2}
    v_permlane16_swap_b32 v{tmp+1}, v{tmp+3}""")
    if single: set_exec(k, 0xffff, 0xffff)
    k(f"buffer_store_dwordx4 {v(tmp,4)}, v{voff}, {s(srd,4)}, s{soff} offen offset:{imm} {mod}")
    if single: k("s_mov_b64 exec, -1")

def tail(k):
    tst = k.vm_ticket()
    for f in range(40, 60):
        if f % 4 == 0: k("s_add_u32 s72, s72, 4096")
        k(f"buffer_load_dwordx4 {w1reg(f)}, v{VL16}, {s(RWS,4)}, s72 offen offset:{1024*(f%4)} sc1")
    XRES = 86
    k(f"""v_add_u32 v5, s31, v{VN}
    v_mul_u32_u24 v5, 1280, v5
    v_lshl_add_u32 v6, v{VG}, 3, v5
    s_mul_i32 s67, s{J}, 160""")
    for t in range(5): k(f"buffer_load_dwordx2 {v(XRES+2*t,2)}, v6, {s(RX,4)}, s67 offen offset:{32*t}")
    cluster_flag_off(k, FO, 53)
    k.wait_vm(tst)
    flag_store(k, 53, 16)
    stamp(k, "O flag")
    k("s_barrier")
    T = 16
    k(f"""v_lshlrev_b32 v7, 4, v0
    v_add_u32 v8, 256, v0
    v_min_u32 v8, 319, v8
    v_lshlrev_b32 v8, 4, v8
    v_min_u32 v9, 59, v{VL}
    v_mul_u32_u24 v10, 3277, v9
    v_lshrrev_b32 v10, 16, v10
    v_mul_u32_u24 v11, 300, v10
    v_cmp_eq_u32 s[60:61], 2, v10
    v_add_u32 v11, v11, v9
    v_subrev_u32 v12, 160, v11
    s_mul_i32 s52, s{J}, 20
    s_add_u32 s52, s52, 320
    v_cndmask_b32 v11, v11, v12, s[60:61]
    v_add_u32 v11, s52, v11
    v_lshlrev_b32 v11, 4, v11
    s_mov_b32 s59, {MODG + 480*16}
    s_mov_b32 s62, {MODG}""")
    poll(k, "pmodb", [(T, 4, 7, "s59", 0, [2]), (T + 4, 4, 8, "s59", 0, [2]), (T + 8, 4, 11, "s62", 0, [2])], 3)
    k("v_cmp_le_u32 vcc, 160, v0")
    for g in range(2):
        b, o = T + 4*g, T + 12
        unpack4(k, o, b)
        for i in range(4): k(f"v_add_f32 v{o+i}, 1.0, v{o+i}")
        k(f"v_cvt_pk_bf16_f32 v{o}, v{o}, v{o+1}\nv_cvt_pk_bf16_f32 v{o+1}, v{o+2}, v{o+3}")
        if g == 0:
            k(f"""v_cndmask_b32 v{o}, v{b}, v{o}, vcc
            v_cndmask_b32 v{o+1}, v{b+1}, v{o+1}, vcc
            v_lshrrev_b32 v7, 1, v7
            v_add_u32 v12, {L_PT + 1280}, v7
            v_add_u32 v7, {L_PT - 1280}, v7
            v_cndmask_b32 v7, v12, v7, vcc
            ds_write_b64 v7, {v(o,2)}""")
        else:
            k(f"v_lshrrev_b32 v8, 1, v8\nv_add_u32 v8, {L_PT - 1280}, v8\nds_write_b64 v8, {v(o,2)}")
    o = T + 12
    unpack4(k, o, T + 8)
    k("v_cmp_eq_u32 vcc, 1, v10")
    for i in range(4):
        k(f"v_add_f32 v{o+4}, 1.0, v{o+i}")
        bf16_round(k, o + 4, o + 4, o + 4)
        k(f"v_mul_f32 v{o+5}, {f32(-math.log(2.0))}, v{o+i}\nv_cndmask_b32 v{o+i}, v{o+i}, v{o+4}, vcc\nv_cndmask_b32 v{o+i}, v{o+i}, v{o+5}, s[60:61]")
    k(f"v_lshlrev_b32 v9, 4, v9\nv_add_u32 v9, {L_MV}, v9\nds_write_b128 v9, {v(o,4)}")
    stamp(k, "modb")
    k(f"""v_min_u32 v7, 31, v{VL}
    v_lshlrev_b32 v7, 3, v7
    s_lshl_b32 s59, s{TB}, 8
    s_add_u32 s59, s59, {FO}""")
    poll(k, "po", [(T, 2, 7, "s59", 0, [0])], 1)
    stamp(k, "O ready")
    AA = 176
    k(f"""s_lshl_b32 s63, s{TB}, 2
    s_add_u32 s63, s63, s{W}
    s_mul_i32 s63, s63, 20480
    s_add_u32 s52, s63, {OB}""")
    ta = []
    for st in range(20):
        if st % 4 == 0 and st: k("s_add_u32 s52, s52, 4096")
        k(f"buffer_load_dwordx4 {a(AA+4*st,4)}, v{VL16}, {s(RWS,4)}, s52 offen offset:{1024*(st%4)} sc1"); ta.append(k.vm_ticket())
    k(f"v_add_u32 v8, 65536, v{VL16}\ns_waitcnt lgkmcnt(0)\ns_barrier")
    ACC, AF = 16, [36, 56]
    def ldA(st):
        for t in range(5):
            o = L_WO + (st*5 + t) * 1024
            k(f"ds_read_b128 {v(AF[st&1]+4*t,4)}, v{VL16 if o < 65536 else 8} offset:{o % 65536}")
        return k.lg_ticket()
    tk = ldA(0)
    for st in range(20):
        nx = ldA(st + 1) if st < 19 else None
        k.wait_lg(tk); tk = nx
        k.wait_vm(ta[st])
        for t in range(5): k(f"{MF16} {v(ACC+4*t,4)}, {v(AF[st&1]+4*t,4)}, {a(AA+4*st,4)}, {'0' if st == 0 else v(ACC+4*t,4)}")
    GA, G2, TT = 36, 56, 76
    k(f"v_lshlrev_b32 v9, 4, v{VG}\nv_add_u32 v9, {L_MV}, v9")
    for t in range(5): k(f"ds_read_b128 {v(GA+4*t,4)}, v9 offset:{64*t}\nds_read_b128 {v(G2+4*t,4)}, v9 offset:{320+64*t}")
    k("s_barrier")
    stamp(k, "oproj mfma")
    k(f"""v_and_b32 v10, 1, v{VG}
    v_lshlrev_b32 v10, 9, v10
    v_lshrrev_b32 v11, 1, v{VG}
    v_lshl_add_u32 v10, v11, 8, v10
    v_lshl_add_u32 v10, v{VN}, 4, v10
    s_mul_i32 s52, s{J}, 2560
    s_add_u32 s64, s63, s52
    s_add_u32 s64, s64, {Y2}
    v_mov_b32 v12, 0
    v_mov_b32 v13, 0
    s_waitcnt lgkmcnt(0)""")
    for t in range(5):
        A_, xr = ACC + 4*t, XRES + 2*t
        unpack4(k, TT, xr)
        for i in range(4): k(f"v_fmac_f32 v{TT+i}, v{GA+4*t+i}, v{A_+i}")
        k(f"v_cvt_pk_bf16_f32 v{xr}, v{TT}, v{TT+1}\nv_cvt_pk_bf16_f32 v{xr+1}, v{TT+2}, v{TT+3}")
        unpack4(k, TT, xr)
        k(f"v_accvgpr_write_b32 a{AX1+2*t}, v{xr}\nv_accvgpr_write_b32 a{AX1+2*t+1}, v{xr+1}")
        for i in range(4): k(f"v_add_f32 v12, v12, v{TT+i}\nv_fmac_f32 v13, v{TT+i}, v{TT+i}\nv_mul_f32 v{TT+i}, v{TT+i}, v{G2+4*t+i}")
        k(f"v_cvt_pk_bf16_f32 v{A_}, v{TT}, v{TT+1}\nv_cvt_pk_bf16_f32 v{A_+1}, v{TT+2}, v{TT+3}")
        if t in (1, 3): pair_store(k, A_ - 4, A_, GA + 4*t, 10, RWS, 64, 512*(t-1), "sc1")
        if t == 4: pair_store(k, A_, A_, GA + 4*t, 10, RWS, 64, 2048, "sc1", single=True)
    reduce_G(k, 12, 11); reduce_G(k, 13, 11)
    k(f"""s_lshl_b32 s52, s{TB}, 3
    s_add_u32 s52, s52, s{J}
    s_lshl_b32 s52, s52, 9
    s_lshl_b32 s53, s{W}, 7
    s_add_u32 s52, s52, s53
    s_add_u32 s52, s52, {STATS}
    v_lshlrev_b32 v11, 3, v{VN}""")
    set_exec(k, 0xffff, 0)
    k(f"buffer_store_dwordx2 v[12:13], v11, {s(RWS,4)}, s52 offen sc1\ns_mov_b64 exec, -1")
    tst = k.vm_ticket()
    def w2load(f):
        if 36 <= f < 52:
            k(f"s_add_u32 m0, s74, {L_W2 + 1024*(f-36)}\ns_add_u32 s52, s73, {1024*f}\nbuffer_load_dwordx4 v{VL16}, {s(RWS,4)}, s52 offen sc1 lds")
        else:
            k(f"s_add_u32 s52, s73, {1024*f}\nbuffer_load_dwordx4 {w2reg(f)}, v{VL16}, {s(RWS,4)}, s52 offen sc1")
    def w2reg(f): return a(112 + 4*f, 4) if f < 36 else a(48 + 4*(f-52), 4)
    k(f"s_lshl_b32 s74, s{W}, 14")
    for f in list(range(36, 52)) + list(range(0, 8)): w2load(f)
    cluster_flag_off(k, FY, 53)
    k.wait_vm(tst)
    flag_store(k, 53, 16)
    stamp(k, "Y flag")
    PB, PS = [16, 20, 24], 28
    k(f"""v_min_u32 v9, 1, v{VN}
    v_mul_u32_u24 v9, 1280, v9
    v_lshl_add_u32 v9, v{VG}, 4, v9
    v_add_u32 v9, {L_PT}, v9""")
    tks = {}
    for st in range(-2, 20):
        if st + 2 < 20:
            k(f"ds_read_b128 {v(PB[(st+2)%3],4)}, v9 offset:{64*(st+2)}"); tks[st+2] = k.lg_ticket()
        if st >= 0:
            k.wait_lg(tks[st])
            for t in range(3): k(f"{MF16} {v(PS+4*t,4)}, {w1reg(3*st+t)}, {v(PB[st%3],4)}, {'0' if st == 0 else v(PS+4*t,4)}")
    k(f"""s_mul_i32 s52, s{W}, 384
    s_add_u32 s52, s52, {L_UB}
    v_mul_u32_u24 v9, 192, v{VN}
    v_lshl_add_u32 v9, v{VG}, 4, v9
    v_add_u32 v9, s52, v9
    v_cmp_eq_u32 vcc, 1, v{VN}
    v_mov_b32 v11, {f32(-LOG2E)}
    v_lshlrev_b32 v6, 4, v{VG}
    v_cndmask_b32 v11, 1.0, v11, vcc
    v_add_u32 v6, s52, v6""")
    for i in range(12): k(f"v_mul_f32 v{PS+i}, v11, v{PS+i}")
    set_exec(k, 0x00030003, 0x00030003)
    for t in range(3): k(f"ds_write_b128 v9, {v(PS+4*t,4)} offset:{64*t}")
    k("s_mov_b64 exec, -1")
    k(f"s_lshl_b32 s59, s{TB}, 8\ns_add_u32 s59, s59, {FY}")
    poll(k, "py", [(T, 2, 7, "s59", 0, [0])], 1)
    stamp(k, "Y ready")
    k(f"""s_mul_i32 s52, s{TB}, {4*20480}
    s_mul_i32 s53, s{W}, 5120
    s_add_u32 s52, s52, s53
    s_add_u32 s52, s52, {Y2}""")
    STG = 72
    def ydma(tt):
        for i in range(5):
            k(f"s_add_u32 m0, s53, {L_Y + tt*20480 + 1024*i}\ns_add_u32 s54, s52, {tt*20480 + 1024*i}\nbuffer_load_dwordx4 v{VL16}, {s(RWS,4)}, s54 offen sc1 lds")
    ydma(0); ydma(1); ty0 = k.vm_ticket()
    k(f"""s_lshl_b32 s55, s{TB}, 12
    s_add_u32 s55, s55, {STATS}
    v_lshlrev_b32 v9, 10, v{VG}
    v_lshl_add_u32 v9, v{VN}, 3, v9""")
    for tt in range(4):
        for h in range(2): k(f"buffer_load_dwordx2 {v(STG+4*tt+2*h,2)}, v9, {s(RWS,4)}, s55 offen offset:{128*tt + 512*h} sc1")
    tstat = k.vm_ticket()
    ydma(2); ydma(3); ty1 = k.vm_ticket()
    RM, BF, ACCF, TE = 64, [80, 88], [16, 40], 72
    k(f"""v_and_b32 v10, 1, v{VG}
    v_mul_u32_u24 v10, 49152, v10
    v_lshrrev_b32 v11, 1, v{VG}
    v_lshl_add_u32 v10, v11, 8, v10
    v_lshl_add_u32 v10, v{VN}, 4, v10
    s_mul_i32 s64, s{TB}, {4*49152}
    s_mul_i32 s52, s{J}, {24*256}
    s_add_u32 s64, s64, s52
    s_mul_i32 s52, s{W}, {6*256}
    s_add_u32 s64, s64, s52
    s_add_u32 s64, s64, {HB}
    s_add_u32 s65, s64, {2*49152}
    v_mov_b32 v12, 1.0
    v_mov_b32 v13, 1.0""")
    def stats():
        k.wait_vm(tstat)
        for tt in range(4):
            b, r = STG + 4*tt, RM + 2*tt
            k(f"v_add_f32 v{b}, v{b}, v{b+2}\nv_add_f32 v{b+1}, v{b+1}, v{b+3}")
            reduce_G(k, b, b + 2); reduce_G(k, b + 1, b + 2)
            k(f"""v_mul_f32 v{b}, {f32(1/640)}, v{b}
            v_mul_f32 v{b+1}, {f32(1/640)}, v{b+1}
            v_fma_f32 v{b+1}, -v{b}, v{b}, v{b+1}
            v_max_f32 v{b+1}, 0, v{b+1}
            v_add_f32 v{b+1}, {f32(1e-5)}, v{b+1}
            v_rsq_f32 v{b+1}, v{b+1}
            s_nop 0
            v_mul_f32 v{r}, {f32(-LOG2E)}, v{b+1}
            v_mul_f32 v{r+1}, -v{b}, v{r}""")
    def epi_steps(pp):
        L = []
        U, E = TE, TE + 8
        for t in range(3):
            tk_ = [None]
            L.append(lambda t=t, tk_=tk_: (k(f"ds_read_b128 {v(U,4)}, v6 offset:{64*t}\nds_read_b128 {v(U+4,4)}, v6 offset:{192+64*t}"), tk_.__setitem__(0, k.lg_ticket())))
            for x in range(2):
                d, r, e = ACCF[pp] + 8*t + 4*x, RM + 2*(2*pp + x), E + 4*x
                def p1(d=d, r=r, e=e, x=x, tk_=tk_):
                    if x == 0: k.wait_lg(tk_[0])
                    for h in (0, 2): k(f"v_pk_fma_f32 {v(e+h,2)}, {v(U+h,2)}, {v(r,2)}, {v(U+4+h,2)} op_sel:[0,1,0] op_sel_hi:[1,1,1]")
                    for h in (0, 2): k(f"v_pk_fma_f32 {v(d+h,2)}, {v(d+h,2)}, {v(r,2)}, {v(e+h,2)} op_sel:[0,0,0] op_sel_hi:[1,0,1]")
                    for i in range(4): k(f"v_exp_f32 v{e+i}, v{d+i}")
                def p2(d=d, e=e):
                    k("s_nop 0")
                    for h in (0, 2): k(f"v_pk_add_f32 {v(e+h,2)}, {v(e+h,2)}, v[12:13]")
                    for i in range(4): k(f"v_rcp_f32 v{e+i}, v{e+i}")
                def p3(d=d, e=e, x=x):
                    k("s_nop 0")
                    for h in (0, 2): k(f"v_pk_mul_f32 {v(d+h,2)}, {v(d+h,2)}, {v(e+h,2)}")
                    o = E + 8 + 2*x
                    k(f"v_cvt_pk_bf16_f32 v{o}, v{d}, v{d+1}\nv_cvt_pk_bf16_f32 v{o+1}, v{d+2}, v{d+3}")
                L += [p1, p2, p3]
            def fin(t=t):
                o = E + 8
                k(f"""s_nop 1
                v_permlane16_swap_b32 v{o}, v{o+2}
                v_permlane16_swap_b32 v{o+1}, v{o+3}
                buffer_store_dwordx4 {v(o,4)}, v10, {s(RWS,4)}, s{64+pp} offen offset:{512*t} sc1
                s_nop 0""")
            L[-1] = (lambda a_=L[-1], b_=fin: (a_(), b_()))
        return L
    w2todo = list(range(8, 36))
    for pp in range(2):
        k.wait_vm(ty0 if pp == 0 else ty1); k("s_barrier")
        if pp == 0: stamp(k, "Y tiles01")
        side = [stats] if pp == 0 else epi_steps(0)
        def ldB(st, pp=pp):
            for x in range(2):
                o = L_Y + (2*pp + x)*20480 + 1024*st
                k(f"ds_read_b128 {a(BF[st&1]+4*x,4)}, v{VL16 if o < 65536 else 8} offset:{o % 65536}")
            return k.lg_ticket()
        tk = ldB(0)
        for st in range(20):
            nx = ldB(st + 1) if st < 19 else None
            k.wait_lg(tk); tk = nx
            for t in range(3):
                for x in range(2):
                    d = ACCF[pp] + 8*t + 4*x
                    k(f"{MF16} {v(d,4)}, {w1reg(3*st+t)}, {a(BF[st&1]+4*x,4)}, {'0' if st == 0 else v(d,4)}")
            if pp == 0 and st == 8: side.pop(0)()
            if pp == 1:
                if side: side.pop(0)()
                if st in (0, 7) and side: side.pop(0)()
            if (pp == 1 or st >= 10) and w2todo: w2load(w2todo.pop(0))
        assert not side
    assert not w2todo
    stamp(k, "ffn1 mfma")
    k("s_barrier\ns_nop 4")
    for f in epi_steps(1): f()
    tst = k.vm_ticket()
    for f in range(52, 60): w2load(f)
    cluster_flag_off(k, FH, 53)
    k.wait_vm(tst)
    flag_store(k, 53, 16)
    stamp(k, "H flag")
    k(f"""v_min_u32 v7, 7, v{VL}
    v_lshlrev_b32 v7, 3, v7
    s_lshl_b32 s59, s{TB}, 8
    s_lshl_b32 s52, s{W}, 6
    s_add_u32 s59, s59, s52
    s_add_u32 s59, s59, {FH}""")
    poll(k, "ph", [(T, 2, 7, "s59", 0, [0])], 1)
    stamp(k, "H ready")
    def hreg(sl, st): return v(96 + 48*sl + 4*st, 4) if sl < 3 else a(4*st, 4)
    th = {}
    for sl in range(4):
        k(f"""s_add_u32 s{60+sl}, s{W}, {sl+1}
        s_and_b32 s{60+sl}, s{60+sl}, 3
        s_lshl_b32 s52, s{TB}, 2
        s_add_u32 s52, s52, s{60+sl}
        s_mul_i32 s52, s52, 49152
        s_mul_i32 s53, s{W}, 12288
        s_add_u32 s52, s52, s53
        s_add_u32 s52, s52, {HB}""")
        for st in range(12):
            if st % 4 == 0 and st: k("s_add_u32 s52, s52, 4096")
            k(f"buffer_load_dwordx4 {hreg(sl,st)}, v{VL16}, {s(RWS,4)}, s52 offen offset:{1024*(st%4)} sc1"); th[sl, st] = k.vm_ticket()
    k(f"s_add_u32 s52, s74, {L_W2}\nv_add_u32 v9, s52, v{VL16}")
    for sl in range(3): k(f"s_mul_i32 s52, s{60+sl}, 15360\ns_add_u32 s52, s52, {L_RED + sl*5120}\nv_add_u32 v{11+sl}, s52, v{VL16}")
    k(f"s_mul_i32 s52, s{W}, 15360\nv_add_u32 v8, s52, v{VL16}")
    ST2 = 240
    tl = {}
    def ldL(f):
        k(f"ds_read_b128 {v(ST2 + 4*((f-36)%4),4)}, v9 offset:{1024*(f-36)}"); tl[f] = k.lg_ticket()
    tred = None
    for sl in range(4):
        for f in range(60):
            st, t = divmod(f, 5)
            if 36 <= f + 3 < 52: ldL(f + 3)
            if t == 0: k.wait_vm(th[sl, st])
            if 36 <= f < 52: k.wait_lg(tl[f]); wr = v(ST2 + 4*((f-36)%4), 4)
            else: wr = w2reg(f)
            d = 16 + 20*sl + 4*t
            k(f"{MF16} {v(d,4)}, {wr}, {hreg(sl,st)}, {'0' if st == 0 else v(d,4)}")
            if sl > 0 and 10 <= f < 15:
                k(f"ds_write_b128 v{11+sl-1}, {v(16 + 20*(sl-1) + 4*(f-10),4)} offset:{1024*(f-10)}")
            if sl == 3 and f == 24:
                k("s_waitcnt lgkmcnt(0)\ns_barrier")
                for i in range(15): k(f"ds_read_b128 {v(16+4*i,4)}, v8 offset:{L_RED + 1024*i}")
                k("s_waitcnt lgkmcnt(0)") if False else None
    stamp(k, "ffn2 mfma")
    GBv = 96
    k(f"v_lshlrev_b32 v9, 4, v{VG}\nv_add_u32 v9, {L_MV + 640}, v9")
    for t in range(5): k(f"ds_read_b128 {v(GBv+4*t,4)}, v9 offset:{64*t}")
    k.srd(RA, sOUT, 2048 * 1280)
    k(f"""v_and_b32 v10, 1, v{VG}
    v_lshl_add_u32 v5, v10, 5, v5
    v_lshrrev_b32 v10, 1, v{VG}
    v_lshl_add_u32 v5, v10, 4, v5""")
    for i in range(10): k(f"v_accvgpr_read_b32 v{120+i}, a{AX1+i}")
    for i in range(20): k(f"v_add_f32 v{16+i}, v{16+i}, v{36+i}\nv_add_f32 v{56+i}, v{56+i}, v{76+i}")
    k("s_waitcnt lgkmcnt(0)")
    for t in range(5):
        TT = 132 + 4*t
        unpack4(k, TT, 120 + 2*t)
        for i in range(4): k(f"v_add_f32 v{16+4*t+i}, v{16+4*t+i}, v{56+4*t+i}")
        for i in range(4): k(f"v_fmac_f32 v{TT+i}, v{GBv+4*t+i}, v{16+4*t+i}")
        k(f"v_cvt_pk_bf16_f32 v{TT}, v{TT}, v{TT+1}\nv_cvt_pk_bf16_f32 v{TT+1}, v{TT+2}, v{TT+3}")
        if t in (1, 3): pair_store(k, TT - 4, TT, 160 + 4*t, 5, RA, 67, 32*(t-1), "")
        if t == 4: pair_store(k, TT, TT, 160 + 4*t, 5, RA, 67, 128, "", single=True)
    k("s_branch L_fin")
    slow_path(k)
    k("L_fin:")
```

```python
import sys, math, struct, os
from asmlib import *

NAME = "adaLN_cond__grouped_kv_mqa__dense_activation_silu__prompt"
KN = NAME + "_kernel"
LOG2E = 1.4426950408889634
QSCALE = LOG2E / math.sqrt(20.0)
def f32(x): return hex(struct.unpack("<I", struct.pack("<f", x))[0])
EPOCH, MODG, FKV, FPREP, FO, FY, FH, STATS, KV = 0, 0x1000, 0x5000, 0x6000, 0x7000, 0x9000, 0xB000, 0x10000, 0x30000
OB, Y2, HB, WOT, W1T, W2T, DBG, WSEND = 0x100000, 0x400000, 0x700000, 0xD00000, 0xE00000, 0x1000000, 0x1400000, 0x2000000
KSTEP = 5120
L_WQ, L_XT, L_SLAB, L_SC, L_MRED, L_WKV, L_MODV = 0, 73728, 94208, 114688, 116224, 122880, 143360
L_WO, L_OP, L_QL = 0, 102400, 153600
L_PT, L_MV = L_QL, L_QL + 2560
L_UB = L_QL + 2560 + 960
L_Y, L_W2, L_RED = 0, 81920, 0
LDS_BYTES = 163840
sX, sWQ, sWK, sWV, sWO, sW1, sW2, sC, sWM, sOUT, sWSP = 4, 6, 8, 10, 12, 16, 18, 20, 22, 24, 26
TB, J, W, TAG = 28, 29, 30, 32
RWS, RX, RA, RB_ = 36, 40, 44, 48
SPIN = 0x40000
OPT = dict(stamp=False, stop=None)

def bf16_round(k, dst, src, tmp):
    k(f"v_cvt_pk_bf16_f32 {v(tmp)}, {v(src)}, {v(src)}\nv_lshlrev_b32 {v(dst)}, 16, {v(tmp)}")
def reduce_G(k, x, t):
    k(f"""v_mov_b32 {v(t)}, {v(x)}
    s_nop 1
    v_permlane16_swap_b32 {v(x)}, {v(t)}
    s_nop 0
    v_add_f32 {v(x)}, {v(x)}, {v(t)}
    v_mov_b32 {v(t)}, {v(x)}
    s_nop 1
    v_permlane32_swap_b32 {v(x)}, {v(t)}
    s_nop 0
    v_add_f32 {v(x)}, {v(x)}, {v(t)}""")
def swap23(k, dst, src, t, keep):
    k(f"""v_and_b32 {v(dst)}, {hex(keep)}, {v(src)}
    v_lshlrev_b32 {v(t)}, 1, {v(src)}
    v_and_b32 {v(t)}, 8, {v(t)}
    v_or_b32 {v(dst)}, {v(dst)}, {v(t)}
    v_lshrrev_b32 {v(t)}, 1, {v(src)}
    v_and_b32 {v(t)}, 4, {v(t)}
    v_or_b32 {v(dst)}, {v(dst)}, {v(t)}""")
def set_exec(k, lo, hi): k(f"s_mov_b32 exec_lo, {lo}\ns_mov_b32 exec_hi, {hi}")
NST = [0]
def stamp(k, name):
    if not OPT["stamp"]: return
    i = NST[0]; NST[0] += 1
    OPT.setdefault("names", []).append(name)
    k(f"s_memtime s[98:99]\ns_waitcnt lgkmcnt(0)\nv_writelane_b32 v15, s98, {i}")
def poll(k, name, loads, nd, exec_lo=None, keep=None):
    top, done = k.label(name), k.label(name + "d")
    k(f"s_mov_b32 s58, {SPIN}\n{top}:")
    for (dst, n, voff, soff, imm, tags) in loads:
        k(f"buffer_load_dword{'x%d' % n if n > 1 else ''} {v(dst, n)}, {v(voff)}, {s(RWS,4)}, {soff} offen offset:{imm} sc1")
    k(f"s_sub_u32 s58, s58, 1\ns_cbranch_scc1 {done}\ns_waitcnt vmcnt(0)")
    first = True
    for (dst, n, voff, soff, imm, tags) in loads:
        for p in tags:
            if first: k(f"v_cmp_ne_u64 vcc, {s(TAG,2)}, {v(dst+p,2)}"); first = False
            else: k(f"v_cmp_ne_u64 s[56:57], {s(TAG,2)}, {v(dst+p,2)}\ns_or_b64 vcc, vcc, s[56:57]")
    k(f"s_cbranch_vccnz {top}\n{done}:\ns_waitcnt vmcnt(0)")
def flag_store(k, soff_reg, vt):
    k(f"""v_mov_b32 {v(vt)}, {s(TAG)}
    v_mov_b32 {v(vt+1)}, {s(TAG+1)}
    v_mov_b32 {v(vt+2)}, 0
    s_mov_b64 exec, 1
    buffer_store_dwordx2 {v(vt,2)}, {v(vt+2)}, {s(RWS,4)}, {s(soff_reg)} offen sc1
    s_mov_b64 exec, -1""")
MF16 = "v_mfma_f32_16x16x32_bf16"
VL, VN, VG = 1, 2, 3
VL16 = 4

def prologue(k):
    k(f"s_cmp_ge_u32 s2, 256\ns_cbranch_scc1 L_end")
    k("""s_load_dwordx16 s[4:19], s[0:1], 0
    s_load_dwordx4 s[20:23], s[0:1], 64
    s_load_dwordx2 s[24:25], s[0:1], 80
    s_load_dwordx2 s[26:27], s[0:1], 96""")
    if OPT["stamp"]: k("s_memtime s[96:97]\ns_memrealtime s[94:95]\nv_mov_b32 v15, 0")
    k(f"""v_and_b32 v{VL}, 63, v0
    v_lshrrev_b32 v{VG}, 6, v0
    v_and_b32 v{VN}, 15, v0
    v_readfirstlane_b32 s{W}, v{VG}
    v_lshrrev_b32 v{VG}, 4, v{VL}
    v_lshlrev_b32 v{VL16}, 4, v{VL}
    s_and_b32 s{TB}, s2, 7
    s_lshl_b32 s{TB}, s{TB}, 2
    s_lshr_b32 s{J}, s2, 3
    s_and_b32 s3, s{J}, 3
    s_add_u32 s{TB}, s{TB}, s3
    s_lshr_b32 s{J}, s{J}, 2
    s_getpc_b64 s[52:53]
    v_lshlrev_b32 v5, 7, v0
    s_waitcnt lgkmcnt(0)
    s_load_dword s{TAG}, s[26:27], {EPOCH}""")
    k("v_add_u32 v7, 0x8000, v5\nv_min_u32 v5, CODE_LAST, v5\nv_min_u32 v7, CODE_LAST, v7")
    k("global_load_dword v14, v5, s[52:53]\nglobal_load_dword v14, v7, s[52:53]")
    k.srd(RWS, sWSP, WSEND); k.srd(RX, sX, 2048 * 1280)
    k(f"""s_add_u32 s52, s2, 128
    s_and_b32 s52, s52, 255
    s_and_b32 s53, s52, 7
    s_lshr_b32 s54, s52, 3
    s_mul_i32 s55, s53, 10
    s_add_u32 s55, s55, s54
    s_mul_i32 s53, s53, 20
    s_add_u32 s53, s53, s54
    s_add_u32 s53, s53, 70
    s_cmp_lt_u32 s52, 80
    s_cselect_b32 s34, s55, s53
    s_mov_b32 s35, s52""")

XR = 16
def issue_x(k):
    k(f"""s_lshl_b32 s31, s{TB}, 6
    s_lshl_b32 s52, s{W}, 4
    s_add_u32 s31, s31, s52
    v_lshrrev_b32 v5, 2, v{VL}
    v_add_u32 v5, s31, v5
    v_mul_u32_u24 v5, 1280, v5
    v_and_b32 v6, 3, v{VL}
    v_lshl_add_u32 v5, v6, 4, v5""")
    for st in range(20): k(f"buffer_load_dwordx4 {v(XR+4*st,4)}, v5, {s(RX,4)}, 0 offen offset:{64*st}")
    return k.vm_ticket()
VWQ = 7
def wq_setup(k):
    k.srd(RA, sWQ, 640 * 1280)
    k(f"""v_lshrrev_b32 v5, 2, v{VL}
    v_mul_u32_u24 v{VWQ}, 1280, v5
    v_lshrrev_b32 v5, 4, v{VL}
    v_and_b32 v5, 2, v5
    v_and_b32 v6, 3, v{VL}
    v_xor_b32 v5, v5, v6
    v_lshl_add_u32 v{VWQ}, v5, 4, v{VWQ}
    s_mul_i32 s76, s{J}, 160
    s_and_b32 s77, s76, 32
    s_sub_u32 s76, s76, s77
    s_mul_i32 s77, s{W}, {32*1280}
    s_add_u32 s76, s76, s77
    s_mul_i32 s77, s{W}, 6144""")
def wq_issue(k, c):
    for q in range(3):
        for r in range(2):
            k(f"""s_add_u32 m0, s77, {L_WQ + c*24576 + q*2048 + r*1024}
            s_add_u32 s52, s76, {c*128*1280 + r*16*1280 + q*64}
            buffer_load_dwordx4 v{VWQ}, {s(RA,4)}, s52 offen lds""")
def wq_warm(k):
    k(f"""v_add_u32 v5, 384, v0
    v_mul_u32_u24 v5, 1280, v5
    s_mul_i32 s52, s{W}, {32*1280}
    s_sub_u32 s52, s76, s52
    buffer_load_dword v14, v5, {s(RA,4)}, s52 offen
    buffer_load_dword v14, v5, {s(RA,4)}, s52 offen offset:128""")
KW = 200
def wkv_issue(k):
    k(f"""s_bitcmp1_b32 s{J}, 1
    s_cselect_b32 s{RB_}, s{sWV}, s{sWK}
    s_cselect_b32 s{RB_+1}, s{sWV+1}, s{sWK+1}
    s_mov_b32 s{RB_+2}, 25600
    s_mov_b32 s{RB_+3}, 0x00020000
    v_lshrrev_b32 v5, 2, v0""")
    swap23(k, 6, 5, 8, 0x33)
    k(f"""v_mul_u32_u24 v6, 40, v6
    v_and_b32 v5, 3, v0
    s_bitcmp1_b32 s{J}, 0
    s_cselect_b32 s52, 4, 0
    v_max_u32 v5, s52, v5
    v_lshl_add_u32 v6, v5, 3, v6
    s_mov_b32 s52, 0""")
    for i in range(10):
        k(f"buffer_load_dwordx2 {v(KW+2*i,2)}, v6, {s(RB_,4)}, s52 offen")
        if i < 9: k("s_add_u32 s52, s52, 2560")
    return k.vm_ticket()
def mod_issue(k):
    k.srd(RB_, sC, 1280)
    k(f"""s_mul_i32 s52, s{W}, 320
    v_lshlrev_b32 v8, 3, v{VL}
    buffer_load_dwordx2 v[10:11], v8, {s(RB_,4)}, s52 offen""")
    tc = k.vm_ticket()
    k.srd(RB_, sWM, 640 * 7680)
    k(f"v_lshrrev_b32 v5, 1, v{VL}")
    swap23(k, 6, 5, 8, 0x13)
    k(f"""v_mul_u32_u24 v6, 7680, v6
    v_and_b32 v5, 1, v{VL}
    v_lshl_add_u32 v6, v5, 4, v6
    s_mul_i32 s52, s{W}, {160*7680}
    s_lshl_b32 s53, s34, 5
    s_add_u32 s52, s52, s53
    s_mul_i32 s53, s{W}, 5120
    s_add_u32 m0, s53, {L_SLAB}""")
    for i in range(5):
        k(f"s_nop 0\nbuffer_load_dwordx4 v6, {s(RB_,4)}, s52 offen lds")
        if i < 4: k(f"s_add_u32 m0, m0, 1024\ns_add_u32 s52, s52, {32*7680}")
    return tc, k.vm_ticket()
def tr_lane32(k, dst, t0, t1):
    k(f"""v_lshrrev_b32 {v(t0)}, 1, v{VG}
    v_lshlrev_b32 {v(t0)}, 4, {v(t0)}
    v_and_b32 {v(t1)}, 1, v{VG}
    v_lshl_add_u32 {v(t0)}, {v(t1)}, 2, {v(t0)}
    v_bfe_u32 {v(t1)}, v{VL}, 2, 2
    v_add_u32 {v(t0)}, {v(t0)}, {v(t1)}
    v_lshlrev_b32 {v(t0)}, 5, {v(t0)}
    v_and_b32 {v(t1)}, 3, v{VL}
    v_lshl_add_u32 {v(dst)}, {v(t1)}, 3, {v(t0)}""")
def mod_job(k, tc, tslab):
    T = 100
    k.wait_vm(tc)
    k(f"""v_lshlrev_b32 v{T}, 16, v10
    v_and_b32 v{T+1}, 0xffff0000, v10
    v_lshlrev_b32 v{T+2}, 16, v11
    v_and_b32 v{T+3}, 0xffff0000, v11""")
    for i in range(4): k(f"v_mul_f32 v{T+4+i}, {f32(-LOG2E)}, v{T+i}")
    for i in range(4): k(f"v_exp_f32 v{T+4+i}, v{T+4+i}")
    k("s_nop 0")
    for i in range(4): k(f"v_add_f32 v{T+4+i}, 1.0, v{T+4+i}")
    for i in range(4): k(f"v_rcp_f32 v{T+4+i}, v{T+4+i}")
    k("s_nop 0")
    for i in range(4): k(f"v_mul_f32 v{T+i}, v{T+i}, v{T+4+i}")
    k(f"""v_cvt_pk_bf16_f32 v10, v{T}, v{T+1}
    v_cvt_pk_bf16_f32 v11, v{T+2}, v{T+3}
    s_mul_i32 s52, s{W}, 320
    s_add_u32 s52, s52, {L_SC}
    v_min_u32 v8, 39, v{VL}
    v_lshlrev_b32 v8, 3, v8
    v_add_u32 v8, s52, v8""")
    set_exec(k, -1, 0xff)
    k("ds_write_b64 v8, v[10:11]\ns_mov_b64 exec, -1")
    k(f"v_lshlrev_b32 v9, 4, v{VG}\nv_add_u32 v9, s52, v9")
    for i in range(5): k(f"ds_read_b128 {v(T+4*i,4)}, v9 offset:{64*i}")
    tr_lane32(k, 8, 10, 11)
    k(f"s_mul_i32 s52, s{W}, 5120\ns_add_u32 s52, s52, {L_SLAB}\nv_add_u32 v8, s52, v8")
    k.wait_vm(tslab)
    for i in range(5): k(f"ds_read_b64_tr_b16 {v(T+20+4*i,2)}, v8 offset:{1024*i}\nds_read_b64_tr_b16 {v(T+22+4*i,2)}, v8 offset:{1024*i+256}")
    k("s_waitcnt lgkmcnt(0)")
    for i in range(5): k(f"{MF16} {v(T+40,4)}, {v(T+20+4*i,4)}, {v(T+4*i,4)}, {'0' if i == 0 else v(T+40,4)}")
    k(f"""s_lshl_b32 s52, s{W}, 6
    s_add_u32 s52, s52, {L_MRED}
    v_lshlrev_b32 v9, 4, v{VG}
    v_add_u32 v8, s52, v9
    v_add_u32 v9, {L_MRED}, v9""")
    set_exec(k, 0x00010001, 0x00010001)
    k(f"s_nop 1\nds_write_b128 v8, {v(T+40,4)}\ns_waitcnt lgkmcnt(0)\ns_barrier")
    lab = k.label("modw")
    k(f"s_cmp_lg_u32 s{W}, 0\ns_cbranch_scc1 {lab}")
    for i in range(4): k(f"ds_read_b128 {v(T+4*i,4)}, v9 offset:{64*i}")
    k(f"""s_mul_i32 s{TAG}, s{TAG}, 0x9e3779b1
    s_lshl_b32 s52, s34, 6
    s_add_u32 s52, s52, {MODG}
    v_lshlrev_b32 v9, 4, v{VG}
    s_waitcnt lgkmcnt(0)""".replace(f"s_mul_i32 s{TAG}, s{TAG}, 0x9e3779b1\n", ""))
    for i in range(4): k(f"v_add_f32 v{T+i}, v{T+i}, v{T+4+i}\nv_add_f32 v{T+8+i}, v{T+8+i}, v{T+12+i}")
    for i in range(4): k(f"v_add_f32 v{T+i}, v{T+i}, v{T+8+i}")
    k(f"""v_cvt_pk_bf16_f32 v{T}, v{T}, v{T+1}
    v_cvt_pk_bf16_f32 v{T+1}, v{T+2}, v{T+3}
    v_mov_b32 v{T+2}, s{TAG}
    v_mov_b32 v{T+3}, s{TAG+1}
    buffer_store_dwordx4 {v(T,4)}, v9, {s(RWS,4)}, s52 offen sc1
    {lab}:
    s_mov_b64 exec, -1""")
def make_tag(k):
    k(f"""s_waitcnt lgkmcnt(0)
    s_mul_i32 s{TAG}, s{TAG}, 0x9e3779b1
    s_add_u32 s{TAG}, s{TAG}, 0x7f4a7c15
    s_xor_b32 s{TAG+1}, s{TAG}, 0xa5a5a5a5""")
def x_proc(k, tx):
    S1, S2, RS, NM, T = 96, 100, 104, 106, 108
    k("s_mov_b32 s52, 0x3f803f80")
    for i in range(8): k(f"v_mov_b32 v{S1+i}, 0")
    k(f"""s_mul_i32 s53, s{W}, 5120
    s_add_u32 s53, s53, {L_XT}
    v_and_b32 v5, 3, v{VL}
    v_lshrrev_b32 v6, 2, v{VL}
    v_lshlrev_b32 v8, 1, v5
    v_xor_b32 v6, v6, v8
    v_lshlrev_b32 v6, 4, v6
    v_lshl_add_u32 v5, v5, 8, v6
    v_add_u32 v5, s53, v5
    v_lshlrev_b32 v8, 1, v{VG}
    v_xor_b32 v6, v{VN}, v8
    v_lshlrev_b32 v6, 4, v6
    v_lshl_add_u32 v6, v{VG}, 8, v6
    v_add_u32 v6, s53, v6""")
    k.wait_vm(tx)
    stamp(k, "x landed")
    for r in range(80):
        k(f"v_dot2_f32_bf16 v{S1+(r&3)}, v{XR+r}, s52, v{S1+(r&3)}\nv_dot2_f32_bf16 v{S2+(r&3)}, v{XR+r}, v{XR+r}, v{S2+(r&3)}")
    k(f"""s_nop 2
    v_add_f32 v{S1}, v{S1}, v{S1+1}
    v_add_f32 v{S1+2}, v{S1+2}, v{S1+3}
    v_add_f32 v{S2}, v{S2}, v{S2+1}
    v_add_f32 v{S2+2}, v{S2+2}, v{S2+3}
    v_add_f32 v{S1}, v{S1}, v{S1+2}
    v_add_f32 v{S2}, v{S2}, v{S2+2}
    s_nop 1
    v_add_f32_dpp v{S1}, v{S1}, v{S1} quad_perm:[1,0,3,2] row_mask:0xf bank_mask:0xf
    v_add_f32_dpp v{S2}, v{S2}, v{S2} quad_perm:[1,0,3,2] row_mask:0xf bank_mask:0xf
    s_nop 1
    v_add_f32_dpp v{S1}, v{S1}, v{S1} quad_perm:[2,3,0,1] row_mask:0xf bank_mask:0xf
    v_add_f32_dpp v{S2}, v{S2}, v{S2} quad_perm:[2,3,0,1] row_mask:0xf bank_mask:0xf
    v_mul_f32 v{S1}, {f32(1/640)}, v{S1}
    v_mul_f32 v{S2}, {f32(1/640)}, v{S2}
    v_fma_f32 v{S2}, -v{S1}, v{S1}, v{S2}
    v_max_f32 v{S2}, 0, v{S2}
    v_add_f32 v{S2}, {f32(1e-5)}, v{S2}
    v_rsq_f32 v{RS}, v{S2}
    s_nop 0
    v_mov_b32 v{RS+1}, v{RS}
    v_mul_f32 v{NM}, -v{S1}, v{RS}
    v_mul_f32 v{NM+1}, -v{S1}, v{RS}""")
    for st in range(20):
        for r in range(4):
            x = XR + 4*st + r; t = T + 2*r
            k(f"v_lshlrev_b32 v{t}, 16, v{x}\nv_and_b32 v{t+1}, 0xffff0000, v{x}")
        for r in range(4): k(f"v_pk_fma_f32 {v(T+2*r,2)}, {v(T+2*r,2)}, {v(RS,2)}, {v(NM,2)}")
        for r in range(4): k(f"v_cvt_pk_bf16_f32 v{XR+4*st+r}, v{T+2*r}, v{T+2*r+1}")
        k(f"ds_write_b128 v5, {v(XR+4*st,4)} offset:{1024*(st%5)}")
        if st % 5 == 4:
            for i in range(st - 4, st + 1): k(f"ds_read_b128 {v(XR+4*i,4)}, v6 offset:{1024*(i%5)}")
    k("s_waitcnt lgkmcnt(0)")
    stamp(k, "x proc")

def pre_attention(k):
    prologue(k)
    wq_setup(k)
    k("s_cmp_lt_u32 s35, 80\ns_cbranch_scc0 L_pathB")
    tc, ts = mod_issue(k)
    tx = issue_x(k)
    for c in range(3): wq_issue(k, c)
    wq_warm(k)
    make_tag(k)
    mod_job(k, tc, ts)
    stamp(k, "modA pub")
    n0 = NST[0]
    x_proc(k, tx)
    k("s_branch L_join")
    k("L_pathB:")
    NST[0] = n0 - (1 if OPT["stamp"] else 0)
    if OPT["stamp"]: NST[0] = n0
    tx = issue_x(k)
    tkw = wkv_issue(k)
    for c in range(3): wq_issue(k, c)
    wq_warm(k)
    tc, ts = mod_issue(k)
    make_tag(k)
    sv = OPT.get("names", [])[:]
    x_proc(k, tx)
    OPT["names"] = sv
    k.wait_vm(tkw)
    k(f"v_lshlrev_b32 v8, 3, v0\nv_add_u32 v8, {L_WKV}, v8")
    for i in range(10): k(f"ds_write_b64 v8, {v(KW+2*i,2)} offset:{2048*i}")
    k("s_cmp_ge_u32 s35, 240\ns_cbranch_scc1 L_join")
    mod_job(k, tc, ts)
    k("L_join:")
    k("s_waitcnt vmcnt(0) lgkmcnt(0)\ns_barrier")
    stamp(k, "join")
    T = 100
    k(f"""v_lshlrev_b32 v8, 4, v0
    v_add_u32 v9, 256, v0
    v_min_u32 v9, 319, v9
    v_lshlrev_b32 v9, 4, v9
    s_mov_b32 s59, {MODG}""")
    poll(k, "pmod", [(T, 4, 8, "s59", 0, [2]), (T + 4, 4, 9, "s59", 0, [2])], 2)
    stamp(k, "mod in")
    for c in range(3, 5): wq_issue(k, c)
    k("v_cmp_le_u32 vcc, 160, v0")
    for g in range(2):
        b, o = T + 4*g, T + 8 + 8*g
        k(f"""v_lshlrev_b32 v{o}, 16, v{b}
        v_and_b32 v{o+1}, 0xffff0000, v{b}
        v_lshlrev_b32 v{o+2}, 16, v{b+1}
        v_and_b32 v{o+3}, 0xffff0000, v{b+1}""")
        for i in range(4):
            k(f"v_add_f32 v{o+4+i}, 1.0, v{o+i}")
            bf16_round(k, o + 4 + i, o + 4 + i, b + 2)
            k(f"v_cndmask_b32 v{o+i}, v{o+i}, v{o+4+i}, vcc" if g == 0 else f"v_mov_b32 v{o+i}, v{o+4+i}")
        k(f"v_add_u32 v{8+g}, {L_MODV}, v{8+g}\nds_write_b128 v{8+g}, {v(o,4)}")
    k("s_waitcnt lgkmcnt(0)\ns_barrier")
    GB, T, KF, ACK, ACV = [100, 116], 132, [140, 144], 148, 152
    tr_lane32(k, 8, 10, 11)
    k(f"v_add_u32 v8, {L_WKV}, v8\nv_lshlrev_b32 v9, 5, v{VG}\nv_add_u32 v9, {L_MODV}, v9")
    def ldmod(st):
        b = GB[st & 1]
        k(f"""ds_read_b128 {v(b,4)}, v9 offset:{128*st}
        ds_read_b128 {v(b+4,4)}, v9 offset:{128*st+16}
        ds_read_b128 {v(b+8,4)}, v9 offset:{2560+128*st}
        ds_read_b128 {v(b+12,4)}, v9 offset:{2560+128*st+16}
        ds_read_b64_tr_b16 {v(KF[st&1],2)}, v8 offset:{1024*st}
        ds_read_b64_tr_b16 {v(KF[st&1]+2,2)}, v8 offset:{1024*st+256}""")
        return k.lg_ticket()
    def kvmf(st):
        k(f"{MF16} {v(ACK,4)}, {v(KF[st&1],4)}, {v(XR+4*st,4)}, {'0' if st == 0 else v(ACK,4)}")
        k(f"{MF16} {v(ACV,4)}, {v(XR+4*st,4)}, {v(KF[st&1],4)}, {'0' if st == 0 else v(ACV,4)}")
    tk = ldmod(0)
    for st in range(20):
        k.wait_lg(tk)
        b = GB[st & 1]
        for r in range(4):
            x = XR + 4*st + r; t = T + 2*r
            k(f"v_lshlrev_b32 v{t}, 16, v{x}\nv_and_b32 v{t+1}, 0xffff0000, v{x}")
        if st > 0: kvmf(st - 1)
        if st < 19: tk = ldmod(st + 1)
        for r in range(4): k(f"v_pk_fma_f32 {v(T+2*r,2)}, {v(T+2*r,2)}, {v(b+8+2*r,2)}, {v(b+2*r,2)}")
        for r in range(4): k(f"v_cvt_pk_bf16_f32 v{XR+4*st+r}, v{T+2*r}, v{T+2*r+1}")
    k("s_nop 1"); kvmf(19)
    stamp(k, "modulated")
    AQ, AF, ACC = 156, [168, 188], 208
    k(f"""v_lshlrev_b32 v10, 3, v{VG}
    v_bfe_u32 v11, v{VL}, 2, 2
    v_add_u32 v10, v10, v11
    v_lshlrev_b32 v10, 6, v10
    v_and_b32 v11, 3, v{VL}
    v_lshl_add_u32 v10, v11, 3, v10
    v_and_b32 v11, 1, v{VG}
    v_lshl_add_u32 v10, v11, 5, v10
    s_and_b32 s53, s{J}, 1""")
    for t in range(5):
        k(f"""s_add_u32 s52, s53, {t}
        s_and_b32 s54, s52, 1
        s_lshl_b32 s54, s54, 5
        s_lshr_b32 s52, s52, 1
        s_lshl_b32 s52, s52, 11
        v_xor_b32 v11, s54, v10
        v_add_u32 v{AQ+2*t}, s52, v11
        v_add_u32 v{AQ+2*t+1}, 65536, v{AQ+2*t}""")
    P = 100
    k(f"s_cmp_ge_u32 s{J}, 4\ns_cbranch_scc1 L_nokv")
    k(f"""s_bitcmp1_b32 s{J}, 1
    s_cselect_b64 vcc, -1, 0
    s_mul_i32 s54, s{TB}, {KSTEP}
    s_add_u32 s54, s54, {KV}""")
    for i in range(4): k(f"v_cndmask_b32 v{ACK+i}, v{ACK+i}, v{ACV+i}, vcc")
    k(f"""v_cvt_pk_bf16_f32 v{P}, v{ACK}, v{ACK+1}
    v_cvt_pk_bf16_f32 v{P+1}, v{ACK+2}, v{ACK+3}
    s_cmp_eq_u32 s{J}, 1
    s_cbranch_scc1 L_ktail
    v_mov_b32 v{P+2}, v{P}
    v_mov_b32 v{P+3}, v{P+1}
    v_lshrrev_b32 v10, 1, v{VG}
    s_nop 0
    v_permlane16_swap_b32 v{P}, v{P+2}
    v_permlane16_swap_b32 v{P+1}, v{P+3}
    s_cmp_eq_u32 s{J}, 0
    s_cbranch_scc0 L_vtile
    s_lshr_b32 s52, s{W}, 1
    s_lshl_b32 s52, s52, 10
    s_and_b32 s55, s{W}, 1
    s_lshl_b32 s55, s55, 8
    s_add_u32 s52, s52, s55
    s_add_u32 s54, s54, s52
    v_lshlrev_b32 v10, 9, v10
    v_lshl_add_u32 v10, v{VN}, 4, v10""")
    set_exec(k, 0xffff, 0xffff)
    k(f"""s_branch L_kv4
    L_vtile:
    s_mul_i32 s52, s{W}, 640
    s_add_u32 s54, s54, s52
    s_and_b32 s52, s{J}, 1
    s_lshl_b32 s55, s52, 8
    s_add_u32 s54, s54, s55
    s_add_u32 s54, s54, 2560
    v_mul_u32_u24 v10, 320, v10
    v_lshl_add_u32 v10, v{VN}, 4, v10
    s_cmp_eq_u32 s52, 1
    s_cselect_b32 exec_lo, 0xf, 0xffff
    s_mov_b32 exec_hi, exec_lo
    L_kv4:
    buffer_store_dwordx4 {v(P,4)}, v10, {s(RWS,4)}, s54 offen sc1
    s_branch L_kvdone
    L_ktail:
    s_lshl_b32 s52, s{W}, 7
    s_add_u32 s54, s54, s52
    v_lshlrev_b32 v10, 3, v{VN}""")
    set_exec(k, 0xffff, 0)
    k(f"""buffer_store_dwordx2 {v(P,2)}, v10, {s(RWS,4)}, s54 offen offset:2048 sc1
    L_kvdone:
    s_mov_b64 exec, -1
    L_nokv:""")
    def ldA(st):
        for t in range(5):
            for h in range(2):
                o = L_WQ + st*6144 + h*256
                w_ = o // 65536
                k(f"ds_read_b64_tr_b16 {v(AF[st&1]+4*t+2*h,2)}, v{AQ+2*t+w_} offset:{o - w_*65536}")
        return k.lg_ticket()
    tk = ldA(0)
    for st in range(20):
        k.wait_lg(tk)
        if st < 19: tk = ldA(st + 1)
        for t in range(5): k(f"{MF16} {v(ACC+4*t,4)}, {v(AF[st&1]+4*t,4)}, {v(XR+4*st,4)}, {'0' if st == 0 else v(ACC+4*t,4)}")
        if st == 9:
            k(f"""s_waitcnt vmcnt(0)
            s_cmp_ge_u32 s{J}, 4
            s_cbranch_scc1 L_nokvflag
            s_lshl_b32 s52, s{TB}, 4
            s_lshl_b32 s53, s{J}, 2
            s_add_u32 s52, s52, s53
            s_add_u32 s52, s52, s{W}
            s_lshl_b32 s52, s52, 3
            s_add_u32 s52, s52, {FKV}""")
            flag_store(k, 52, 100)
            k("L_nokvflag:\ns_barrier")
    stamp(k, "q mfma")
    k(f"""s_lshr_b32 s52, s{W}, 1
    s_mul_i32 s52, s52, 5120
    s_add_u32 s52, s52, {L_QL}
    s_and_b32 s53, s{W}, 1
    s_lshl_b32 s53, s53, 4
    v_add_u32 v8, s53, v{VN}
    s_mov_b32 s53, {f32(QSCALE)}""")
    for t in range(5):
        k(f"""v_add_u32 v9, {4*t}, v{VG}
        v_mul_u32_u24 v10, 13108, v9
        v_lshrrev_b32 v10, 16, v10
        v_mul_u32_u24 v11, 5, v10
        v_sub_u32 v9, v9, v11
        v_mul_u32_u24 v10, 1280, v10
        v_add_u32 v10, s52, v10
        v_lshrrev_b32 v11, 1, v9
        v_lshl_add_u32 v11, v11, 9, v10
        v_lshl_add_u32 v11, v8, 4, v11
        v_and_b32 v12, 1, v9
        v_lshl_add_u32 v11, v12, 3, v11
        v_lshl_add_u32 v10, v8, 3, v10
        v_add_u32 v10, 1024, v10
        v_cmp_eq_u32 vcc, 4, v9""")
        A_ = ACC + 4*t
        for i in range(4): k(f"v_mul_f32 v{A_+i}, s53, v{A_+i}")
        k(f"""v_cndmask_b32 v11, v11, v10, vcc
        v_cvt_pk_bf16_f32 v{A_}, v{A_}, v{A_+1}
        v_cvt_pk_bf16_f32 v{A_+1}, v{A_+2}, v{A_+3}
        ds_write_b64 v11, {v(A_,2)}""")
    k("s_waitcnt lgkmcnt(0)\ns_barrier")
    stamp(k, "q done")

def dump_lds(k, off, nbytes, dst):
    k(f"s_barrier\nv_lshlrev_b32 v8, 4, v0\nv_add_u32 v9, {off}, v8\ns_mul_i32 s52, s2, {nbytes}\ns_add_u32 s52, s52, {dst}")
    for i in range(nbytes // 4096):
        k(f"ds_read_b128 v[10:13], v9 offset:{4096*i}\ns_waitcnt lgkmcnt(0)\nbuffer_store_dwordx4 v[10:13], v8, {s(RWS,4)}, s52 offen\ns_add_u32 s52, s52, 4096\ns_nop 1")

def epilogue(k):
    if OPT["stamp"]:
        k("s_waitcnt vmcnt(0)"); stamp(k, "end")
        k(f"""s_memrealtime s[92:93]
        s_waitcnt lgkmcnt(0)
        s_sub_u32 s92, s92, s94
        v_writelane_b32 v15, s92, 62
        v_writelane_b32 v15, s96, 63
        v_writelane_b32 v15, s94, 61
        s_lshl_b32 s52, s2, 2
        s_add_u32 s52, s52, s{W}
        s_lshl_b32 s52, s52, 8
        s_add_u32 s52, s52, {0x1300000}
        v_lshlrev_b32 v8, 2, v{VL}
        buffer_store_dword v15, v8, {s(RWS,4)}, s52 offen""")
    k("L_end:\ns_endpgm\nL_code_end:")

def build(k, path):
    head = open("cdna_kernels/" + NAME + ".s.ref").read().split("; Override launch geometry")[0]
    out = head + f"; @launch grid=(256,1,1) block=(256,1,1) lds={LDS_BYTES}\n"
    out += '.amdgcn_target "amdgcn-amd-amdhsa--gfx950"\n.text\n'
    errs = check_hazards(k)
    txt = k.text()
    out += txt + f".set CODE_LAST, L_code_end - {KN} - 256\n"
    out += '.section .rodata,"a"\n' + k.desc()
    open(path, "w").write(out)
    for e in errs: print("HAZARD", e)
    if OPT["stamp"]: open(path + ".names", "w").write("\n".join(OPT["names"]))
    return errs

if __name__ == "__main__":
    import argparse
    ap = argparse.ArgumentParser(); ap.add_argument("out"); ap.add_argument("--stamp", action="store_true"); ap.add_argument("--stop")
    a_ = ap.parse_args(); OPT["stamp"] = a_.stamp; OPT["stop"] = a_.stop
    k = Kern(KN, vgpr=256, agpr=256, sgpr=100)
    pre_attention(k)
    if a_.stop == "q":
        dump_lds(k, L_QL - 2048, 12288, DBG)
        k(f"s_cmp_lg_u32 s2, 0\ns_cbranch_scc1 L_noep\ns_sleep 100\ns_mov_b32 s52, {EPOCH}"); flag_store(k, 52, 10); k("L_noep:")
    else:
        import gen2b
        gen2b.rest(k, sys.modules[__name__])
    epilogue(k)
    build(k, a_.out)
```
